```python
import torch

def _softmax(x, axis=-1):
    return torch.softmax(x, dim=axis)
def _gelu(x):
    return torch.nn.functional.gelu(x, approximate="tanh")
def _silu(x):
    return torch.nn.functional.silu(x)
def _sigmoid(x):
    return torch.sigmoid(x)
def _layernorm(x, axis=-1, eps=1e-5):
    m = x.mean(dim=axis, keepdim=True)
    v = x.var(dim=axis, keepdim=True, unbiased=False)
    return (x - m) / torch.sqrt(v + eps)
def _scatter_add(tgt, idx, src, axis=0):
    return tgt.clone().index_add_(axis, idx, src)
def _segment_sum(src, seg, n):
    out = torch.zeros((n,) + src.shape[1:], dtype=src.dtype)
    return out.index_add_(0, seg, src)
def _pad(x, pw):
    flat = tuple(v for pair in reversed(pw) for v in pair)
    return torch.nn.functional.pad(x, flat)

kernel_name = 'standalone__kv_cache_quant_int4_int2_kv_with_per_channel_or_per_token_scales__prompt'

def setup_inputs():

    _w = (lambda a: (lambda t: t.to(torch.bfloat16) if t.is_floating_point() else t)(torch.as_tensor(a)))
    B = 1
    Sq = 2048
    Skv = 2048
    Hq = 32
    Hkv = 32
    Dh = 192
    bits = 3
    G = 32
    if G <= 0 or G >= Skv:
        G = max(1, Skv // 2)
    Skv = (Skv // G) * G
    ngk = Skv // G
    qmax = (1 << bits) - 1
    return {
        "q": _w((lambda *s: torch.randn(*s, dtype=torch.bfloat16) * 1.6)(B, Hq, Sq, Dh)),
        "qk": _w(torch.randint(0, qmax + 1, (B, Hkv, Skv, Dh)).to(torch.int32)),
        "qv": _w(torch.randint(0, qmax + 1, (B, Hkv, Skv, Dh)).to(torch.int32)),
        "k_scales": _w(torch.abs((lambda *s: torch.randn(*s, dtype=torch.bfloat16) * 1.6)(B, Hkv, ngk, Dh)) * 0.05 + 0.02),
        "k_zeros": _w((lambda *s: torch.randn(*s, dtype=torch.bfloat16) * 1.6)(B, Hkv, ngk, Dh) + float(qmax) / 2.0),
        "v_scales": _w(torch.abs((lambda *s: torch.randn(*s, dtype=torch.bfloat16) * 0.05)(B, Hkv, Skv, 1)) * 0.05 + 0.02),
        "v_zeros": _w((lambda *s: torch.randn(*s, dtype=torch.bfloat16) * 0.05)(B, Hkv, Skv, 1) + float(qmax) / 2.0),
    }

def reference(q, qk, qv, k_scales, k_zeros, v_scales, v_zeros):
    B, Hq, Sq, Dh = q.shape
    Hkv, Skv = qk.shape[1], qk.shape[2]
    ngk = k_scales.shape[2]
    G = Skv // ngk
    ks = (lambda x, n, axis: torch.repeat_interleave(x, n, dim=axis))(k_scales, G, axis=2)
    kz = (lambda x, n, axis: torch.repeat_interleave(x, n, dim=axis))(k_zeros, G, axis=2)
    k = ((lambda x, dt: x.to(dt))(qk, q.dtype) - kz) * ks
    v = ((lambda x, dt: x.to(dt))(qv, q.dtype) - v_zeros) * v_scales
    rep = Hq // Hkv
    if rep > 1:
        k = (lambda x, n, axis: torch.repeat_interleave(x, n, dim=axis))(k, rep, axis=1)
        v = (lambda x, n, axis: torch.repeat_interleave(x, n, dim=axis))(v, rep, axis=1)
    scale = float(Dh) ** -0.5
    logits = torch.einsum("bhqd,bhkd->bhqk", q, k) * scale
    p = _softmax(logits, axis=-1)
    o = torch.einsum("bhqk,bhkd->bhqd", p, v)
    return o
```

```python
import re
TRANS = ("v_exp_f32", "v_log_f32", "v_rcp_f32", "v_rsq_f32", "v_sqrt_f32", "v_sin_f32", "v_cos_f32")
REG = re.compile(r"^(-?\|?)([vas])(\d+)\|?$|^(-?\|?)([vas])\[(\d+):(\d+)\]\|?$")
def regs_of(tok):
    tok = tok.strip()
    if tok in ("vcc", "exec", "m0", "scc"): return [tok]
    if tok in ("vcc_lo", "vcc_hi"): return ["vcc"]
    if tok in ("exec_lo", "exec_hi"): return ["exec"]
    m = REG.match(tok)
    if not m: return []
    if m.group(2): return [(m.group(2), int(m.group(3)))]
    return [(m.group(5), i) for i in range(int(m.group(6)), int(m.group(7)) + 1)]
class I:
    __slots__ = ("text", "op", "kind", "rd", "wr", "C", "AB", "tag", "waits", "wide", "note")
    def __init__(self, text, tag=None, waits=(), note=None):
        self.text = text; self.tag = tag; self.waits = tuple(waits); self.note = note
        t = text.split(";")[0].strip()
        self.C = []; self.AB = []; self.wide = False
        if t.endswith(":") or t.startswith(".") or not t:
            self.op = ""; self.kind = "label"; self.rd = []; self.wr = []; return
        parts = t.split(None, 1); op = parts[0]; self.op = op
        rest = parts[1] if len(parts) > 1 else ""
        ops = [o.strip() for o in rest.split(",")] if rest else []
        mods = ""
        if ops:
            sp = ops[-1].split(None, 1)
            ops[-1] = sp[0]; mods = sp[1] if len(sp) > 1 else ""
        clean = []
        for o in ops:
            clean.append(o.split(None, 1)[0] if o else o)
        R = [regs_of(o) for o in clean]
        flat = lambda L: [r for x in L for r in x]
        rd = []; wr = []
        if op.startswith("v_mfma"):
            k = "mfma"; wr = R[0]; rd = flat(R[1:4]); self.C = R[3]; self.AB = R[1] + R[2]
        elif op.startswith("v_cmp"):
            k = "valu"; wr = R[0]; rd = flat(R[1:])
        elif op.startswith("v_permlane") and "swap" in op:
            k = "valu"; wr = R[0] + R[1]; rd = R[0] + R[1]
        elif op.startswith("v_"):
            k = "trans" if op.replace("_e32", "").replace("_e64", "") in TRANS else "valu"
            wr = R[0]; rd = flat(R[1:])
            if op.startswith(("v_fmac", "v_mac", "v_writelane")): rd += R[0]
            if op.startswith("v_cndmask") and len(clean) == 3: rd += ["vcc"]
        elif op.startswith("buffer_load") or op.startswith("global_load"):
            if re.search(r"\blds\b", rest): k = "dma"; rd = flat(R) + ["m0"]
            else: k = "vload"; wr = R[0]; rd = flat(R[1:])
        elif op.startswith("buffer_store") or op.startswith("global_store"):
            k = "vstore"; rd = flat(R); self.wide = op.endswith(("x3", "x4"))
        elif op.startswith("buffer_atomic") or op.startswith("global_atomic"):
            k = "vatomic"; rd = flat(R)
            if re.search(r"\bsc0\b", rest): wr = R[0]
        elif op.startswith(("buffer_inv", "buffer_wbl2")):
            k = "vmisc"
        elif op.startswith(("ds_read", "ds_bpermute", "ds_swizzle")):
            k = "lds"; wr = R[0]; rd = flat(R[1:])
        elif op.startswith("ds_write"):
            k = "lds"; rd = flat(R)
        elif op.startswith("s_load") or op.startswith("s_memtime") or op.startswith("s_memrealtime"):
            k = "smem"; wr = R[0]; rd = flat(R[1:])
        elif op in ("s_waitcnt", "s_barrier", "s_nop", "s_setprio", "s_endpgm", "s_sleep", "s_branch"):
            k = "ctl"
        elif op.startswith("s_cbranch"):
            k = "ctl"; rd = ["vcc"] if "vcc" in op else (["exec"] if "exec" in op else ["scc"])
        elif op.startswith("s_cmp") or op.startswith("s_bitcmp"):
            k = "salu"; rd = flat(R); wr = ["scc"]
        elif op.startswith("s_"):
            k = "salu"; wr = R[0] + ["scc"]; rd = flat(R[1:])
            if "saveexec" in op: wr += ["exec"]; rd += ["exec"]
            if op.startswith(("s_addc", "s_subb", "s_cselect")): rd += ["scc"]
        else:
            raise ValueError("unknown op " + text)
        self.kind = k; self.rd = rd; self.wr = wr
    def states(self):
        if self.kind == "label": return 0
        if self.op == "s_nop": return int(self.text.split()[1]) + 1
        return 1
VM = ("vload", "vstore", "dma", "vatomic", "vmisc")
def insert_waits(segs, verbose=False):
    need = {}
    vmq = []
    lgq = []
    for name, L in segs:
        nd = need.setdefault(id(L), {})
        for pos, ins in enumerate(L):
            vm = None; lg = None
            touched = set(ins.rd) | set(ins.wr)
            if ins.op == "s_waitcnt":
                m = re.search(r"vmcnt\((\d+)\)", ins.text)
                if m: vmq = vmq[len(vmq) - int(m.group(1)):] if int(m.group(1)) < len(vmq) else vmq
                if m and int(m.group(1)) == 0: vmq = []
                m = re.search(r"lgkmcnt\((\d+)\)", ins.text)
                if m:
                    n = int(m.group(1))
                    if n == 0: lgq = []
                    elif n < len(lgq) and not any(x.kind == "smem" for x in lgq): lgq = lgq[len(lgq) - n:]
                continue
            for i, o in enumerate(vmq):
                if (set(o.wr) & touched) or (o.tag is not None and o.tag in ins.waits):
                    c = len(vmq) - 1 - i
                    vm = c if vm is None else min(vm, c)
            for i, o in enumerate(lgq):
                if (set(o.wr) & touched) or (o.tag is not None and o.tag in ins.waits):
                    c = len(lgq) - 1 - i
                    if any(x.kind == "smem" for x in lgq): c = 0
                    lg = c if lg is None else min(lg, c)
            old = nd.get(pos, (None, None))
            if old[0] is not None: vm = old[0] if vm is None else min(vm, old[0])
            if old[1] is not None: lg = old[1] if lg is None else min(lg, old[1])
            if vm is not None: vm = min(vm, 63)
            if lg is not None: lg = min(lg, 15)
            if vm is not None or lg is not None: nd[pos] = (vm, lg)
            if vm is not None: vmq = vmq[len(vmq) - vm:] if vm > 0 else []
            if lg is not None: lgq = lgq[len(lgq) - lg:] if lg > 0 else []
            if ins.kind in VM: vmq.append(ins)
            if ins.kind in ("lds", "smem"): lgq.append(ins)
    return need
def apply_waits(L, nd):
    out = []
    for pos, ins in enumerate(L):
        if pos in nd:
            vm, lg = nd[pos]
            s = "s_waitcnt" + (f" vmcnt({vm})" if vm is not None else "") + (f" lgkmcnt({lg})" if lg is not None else "")
            out.append(I(s))
        out.append(ins)
    L[:] = out
def isv(r): return isinstance(r, tuple) and r[0] in "va"
def iss(r): return r == "vcc" or (isinstance(r, tuple) and r[0] == "s")
def required(p, c):
    n = 0
    pw = set(p.wr); cr = set(c.rd); cw = set(c.wr)
    VAL = ("valu", "trans")
    MEM = VM + ("lds",)
    if p.kind == "mfma":
        if c.kind == "mfma":
            if pw & set(c.AB): n = max(n, 8)
            ov = pw & set(c.C)
            if ov and list(c.C) != list(p.wr): n = max(n, 6)
            if (pw & cw) and list(c.C) != list(p.wr): n = max(n, 6)
        elif c.kind in VAL or c.kind in MEM:
            if pw & (cr | cw): n = max(n, 8)
        if c.kind in VAL and set(p.C) & cw: n = max(n, 3)
    if p.kind in VAL:
        vw = {r for r in pw if isv(r)}; sw = {r for r in pw if iss(r)}
        if c.kind == "mfma" and vw & cr: n = max(n, 2)
        if c.kind == "mfma" and "exec" in pw: n = max(n, 4)
        if p.kind == "trans" and c.kind in VAL + MEM + ("mfma",) and vw & cr: n = max(n, 1 if c.kind != "mfma" else 2)
        if c.kind in VAL and sw & cr: n = max(n, 4 if c.op.startswith(("v_readlane", "v_writelane")) else 2)
        if c.kind in VM and sw & cr: n = max(n, 5)
        if c.op.startswith(("v_readlane", "v_readfirstlane")) and vw & cr: n = max(n, 1)
        if ("dpp" in c.text or "row_" in c.text or c.op.startswith("v_permlane")) and c.kind in VAL and vw & cr: n = max(n, 2)
        if "op_sel" in p.text and not p.op.startswith("v_pk") and c.kind in VAL and vw & cr: n = max(n, 1)
        if c.kind == "salu" and sw & cr: n = max(n, 1)
    if p.kind == "salu" and "m0" in pw and c.kind == "dma": n = max(n, 1)
    if p.kind == "vstore" and p.wide:
        data = set(regs_of(p.text.split(None, 1)[1].split(",")[0]))
        if data & cw: n = max(n, 2)
    return n
def pad_hazards(segs):
    changed = True; total = 0
    while changed:
        changed = False
        hist = []
        for name, L in segs:
            pos = 0
            while pos < len(L):
                c = L[pos]
                if c.kind == "label": pos += 1; continue
                dist = 0; need = 0
                for p in reversed(hist[-24:]):
                    r = required(p, c)
                    if r > dist: need = max(need, r - dist)
                    dist += p.states()
                    if dist >= 10: break
                if need > 0:
                    nop = I(f"s_nop {need - 1}")
                    L.insert(pos, nop); hist.append(nop); pos += 1; changed = True; total += 1
                hist.append(c); pos += 1
    return total
def finalize(segs):
    nd = insert_waits(segs)
    nd = insert_waits(segs) if False else nd
    done = set()
    for name, L in segs:
        if id(L) in done: continue
        done.add(id(L)); apply_waits(L, nd.get(id(L), {}))
    nd2 = insert_waits(segs)
    assert not any(nd2.values()), nd2
    return pad_hazards(segs)
def text(L): return "\n".join(("" if i.kind == "label" else "  ") + i.text for i in L) + "\n"
```

```python
import sys, math, struct
sys.path.insert(0, "dev")
from emit import *
NAME = "standalone__kv_cache_quant_int4_int2_kv_with_per_channel_or_per_token_scales__prompt"
def f2u(x): return struct.unpack("<I", struct.pack("<f", x))[0]
CFOLD = f2u(192 ** -0.5 * math.log2(math.e))
BOFF = 40.0
TILE = 24576; HEADWS = 64 * TILE
HDR = open("cdna_kernels/" + NAME + ".s.ref").read().split("; Override launch geometry")[0]

S_WS = 4
S_Q = 8
S_QK = 12; S_QV = 16; S_KS = 20; S_KZ = 24; S_VS = 28; S_VZ = 32
S_W = 36
S_W6144 = 37
S_H = 38; S_J = 39
S_DMA = 40
S_CNT = 41
S_C = 42
S_MASK = 44
S_PT768 = 45
S_PT384 = 46
S_PT64 = 47
S_PTW = 48
S_TMP = 50
S_VZS = 60
S_VSS = 68
S_PASS = 76
S_OUT = 80
S_DBG = 84
S_KARG = 88
V_KA, V_KB, V_VA, V_VB, V_D0, V_D1 = 4, 5, 6, 7, 8, 9
V_ONES = 12; V_Q = 16; V_K = 64; V_V = 112; V_S = 136; V_NM = 168; V_P = 184; V_PR = 200
def vr(b, n=4): return f"v[{b}:{b+n-1}]"
def ar(b, n=4): return f"a[{b}:{b+n-1}]"
def sr(b, n=4): return f"s[{b}:{b+n-1}]"
def Qreg(qb, s): return vr(V_Q + (qb * 6 + s) * 4) if qb < 2 else ar(208 + ((qb - 2) * 6 + s) * 4)
def Kreg(tb, s): return vr(V_K + (tb * 6 + s) * 4)
def Sreg(qb, tb): return V_S + qb * 8 + tb * 4
def Oreg(db, qb): return (db * 4 + qb) * 4
def Lreg(qb): return 192 + qb * 4

def srd(A, d, ptr, off_lo=None, nrec=0):
    if off_lo is None:
        A(f"s_mov_b32 s{d}, s{ptr}"); A(f"s_mov_b32 s{d+1}, s{ptr+1}")
    else:
        A(f"s_add_u32 s{d}, s{ptr}, s{off_lo}"); A(f"s_addc_u32 s{d+1}, s{ptr+1}, 0")
    A(f"s_mov_b32 s{d+2}, {nrec}"); A(f"s_mov_b32 s{d+3}, 0x00020000")

class PA:
    kld = 0; ksc = 0; kst = 0; vld = 0; vsc = 0; vst = 0
def prod_addr_setup(A, base):
    PA.kld, PA.ksc, PA.kst, PA.vld, PA.vsc, PA.vst = range(base, base + 6)
    A("v_and_b32 v1, 15, v0"); A("v_lshrrev_b32 v2, 4, v0")
    A(f"v_mul_u32_u24 v{PA.kld}, 768, v1"); A(f"v_lshl_add_u32 v{PA.kld}, v2, 5, v{PA.kld}")
    A(f"v_lshlrev_b32 v{PA.ksc}, 4, v2")
    A(f"s_mul_i32 s{S_TMP}, s{S_W}, 3072")
    A(f"v_lshlrev_b32 v{PA.kst}, 4, v0"); A(f"v_add_u32 v{PA.kst}, s{S_TMP}, v{PA.kst}")
    A(f"v_add_u32 v{PA.vst}, 12288, v{PA.kst}")
    A(f"v_mul_u32_u24 v{PA.vld}, 12, v0"); A(f"v_add_u32 v{PA.vld}, s{S_TMP}, v{PA.vld}")
    A("v_and_b32 v1, 3, v0"); A("v_bfe_u32 v2, v0, 2, 1"); A("v_lshlrev_b32 v2, 5, v2"); A("v_lshl_add_u32 v1, v1, 1, v2")
    A(f"s_lshl_b32 s{S_TMP}, s{S_W}, 3"); A(f"v_add_u32 v{PA.vsc}, s{S_TMP}, v1")
    A(f"s_lshr_b32 s{S_TMP}, s{S_W}, 1"); A(f"s_mul_i32 s{S_TMP}, s{S_TMP}, {16*768}")
    A(f"s_and_b32 s{S_TMP+1}, s{S_W}, 1"); A(f"s_mul_i32 s{S_TMP+2}, s{S_TMP+1}, 384"); A(f"s_add_u32 s{S_TMP}, s{S_TMP}, s{S_TMP+2}")
    A(f"v_add_u32 v{PA.kld}, s{S_TMP}, v{PA.kld}")
    A(f"s_mul_i32 s{S_TMP+2}, s{S_TMP+1}, 192"); A(f"v_add_u32 v{PA.ksc}, s{S_TMP+2}, v{PA.ksc}")
def rnd(d, s): return f"v_cvt_pk_bf16_f32 v{d}, 0, v{s}"
def k_unit(i, R, T, stflags=""):
    ld = [I(f"buffer_load_dwordx4 {vr(R)}, v{PA.kld}, {sr(S_QK)}, s{S_PT768} offen offset:{128*i}"),
          I(f"buffer_load_dwordx4 {vr(R+4)}, v{PA.kld}, {sr(S_QK)}, s{S_PT768} offen offset:{128*i+16}"),
          I(f"buffer_load_dwordx4 {vr(R+8)}, v{PA.ksc}, {sr(S_KZ)}, s{S_PT384} offen offset:{64*i}"),
          I(f"buffer_load_dwordx4 {vr(R+12)}, v{PA.ksc}, {sr(S_KS)}, s{S_PT384} offen offset:{64*i}")]
    c = []
    for p in range(4):
        a, b = R + 2 * p, R + 2 * p + 1; z = R + 8 + p; s = R + 12 + p
        c += [f"v_cvt_f32_i32 v{a}, v{a}", f"v_cvt_f32_i32 v{b}, v{b}",
              f"v_lshlrev_b32 v{T}, 16, v{z}", f"v_and_b32 v{T+1}, s{S_MASK}, v{z}",
              rnd(a, a), rnd(b, b),
              f"v_lshlrev_b32 v{T+2}, 16, v{s}", f"v_and_b32 v{T+3}, s{S_MASK}, v{s}",
              f"v_pk_add_f32 {vr(a,2)}, {vr(a,2)}, {vr(T,2)} neg_lo:[0,1] neg_hi:[0,1]",
              f"v_pk_mul_f32 {vr(T+2,2)}, {vr(T+2,2)}, {sr(S_C,2)}",
              rnd(a, a), rnd(b, b),
              f"v_pk_mul_f32 {vr(a,2)}, {vr(a,2)}, {vr(T+2,2)}",
              f"v_cvt_pk_bf16_f32 v{z}, v{a}, v{b}"]
    st = [I(f"buffer_store_dwordx4 {vr(R+8)}, v{PA.kst}, {sr(S_WS)}, s{S_PTW} offen offset:{1024*i}{stflags}", tag="pst")]
    return ld, [I(x) for x in c], st
def v_unit(R, X, Z, stflags=""):
    ld = [I(f"buffer_load_short_d16_hi v{Z}, v{PA.vsc}, {sr(S_VZ)}, s{S_PT64} offen"),
          I(f"buffer_load_short_d16_hi v{Z+1}, v{PA.vsc}, {sr(S_VS)}, s{S_PT64} offen")]
    for t in range(8):
        if t < 4: ld.append(I(f"buffer_load_dwordx3 {vr(R+4*t,3)}, v{PA.vld}, {sr(S_QV)}, s{S_PT768} offen offset:{768*t}"))
        else: ld.append(I(f"buffer_load_dwordx3 {vr(R+4*t,3)}, v{PA.vld}, {sr(S_QV)}, s{S_PT768+4} offen offset:{768*(t-4)}"))
    c = []
    for t in range(8): c.append(f"v_readlane_b32 s{S_VZS+t}, v{Z}, {t}")
    for t in range(8): c.append(f"v_readlane_b32 s{S_VSS+t}, v{Z+1}, {t}")
    out = [R, R + 4, X]
    for u in range(4):
        g = R + 8 * u
        c += [f"v_cvt_f32_i32 v{g+7}, v{g+6}", f"v_cvt_f32_i32 v{g+6}, v{g+2}", f"v_cvt_f32_i32 v{g+2}, v{g+1}",
              f"v_cvt_f32_i32 v{g+3}, v{g+5}", f"v_cvt_f32_i32 v{g+1}, v{g+4}", f"v_cvt_f32_i32 v{g}, v{g}"]
        pr = [g, g + 2, g + 6]
        for p in (pr[2], pr[1], pr[0]): c += [rnd(p, p), rnd(p + 1, p + 1)]
        for p in (pr[2], pr[1], pr[0]): c.append(f"v_pk_add_f32 {vr(p,2)}, {vr(p,2)}, {sr(S_VZS+2*u,2)} neg_lo:[0,1] neg_hi:[0,1]")
        for p in (pr[2], pr[1], pr[0]): c += [rnd(p, p), rnd(p + 1, p + 1)]
        for p in (pr[2], pr[1], pr[0]): c.append(f"v_pk_mul_f32 {vr(p,2)}, {vr(p,2)}, {sr(S_VSS+2*u,2)}")
        for j in (2, 1, 0): c.append(f"v_cvt_pk_bf16_f32 v{out[j]+u}, v{pr[j]}, v{pr[j]+1}")
    st = [I(f"buffer_store_dwordx4 {vr(out[j])}, v{PA.vst}, {sr(S_WS)}, s{S_PTW} offen offset:{1024*j}{stflags}", tag="pst") for j in range(3)]
    return ld, [I(x) for x in c], st
S_PT768B = S_PT768 + 4
def set_ptile(A, st):
    A(f"s_mul_i32 s{S_PT768}, s{st}, {32*768}"); A(f"s_add_u32 s{S_PT768B}, s{S_PT768}, {16*768}")
    A(f"s_mul_i32 s{S_PT384}, s{st}, 384"); A(f"s_lshl_b32 s{S_PT64}, s{st}, 6"); A(f"s_mul_i32 s{S_PTW}, s{st}, {TILE}")
def load_ptrs_and_srds(A, prod=True, attn=True):
    K = S_KARG
    A(f"s_load_dwordx4 {sr(K)}, s[0:1], 0"); A(f"s_load_dwordx4 {sr(K+4)}, s[0:1], 16"); A(f"s_load_dwordx4 {sr(K+8)}, s[0:1], 32")
    A(f"s_load_dwordx4 {sr(S_TMP+2)}, s[0:1], 48"); A(f"s_load_dwordx4 {sr(S_TMP+6)}, s[0:1], 64")
    A("v_lshrrev_b32 v1, 6, v0"); A("v_and_b32 v0, 63, v0"); A(f"v_readfirstlane_b32 s{S_W}, v1")
    A(f"s_mul_i32 s{S_TMP}, s{S_H}, {HEADWS}")
    A("s_waitcnt lgkmcnt(0)")
    srd(A, S_WS, S_TMP + 8, S_TMP, HEADWS)
    if prod:
        srd(A, S_QK, K + 2, S_TMP, HEADWS); srd(A, S_QV, K + 4, S_TMP, HEADWS)
        A(f"s_mul_i32 s{S_TMP}, s{S_H}, 24576"); srd(A, S_KS, K + 6, S_TMP, 24576); srd(A, S_KZ, K + 8, S_TMP, 24576)
        A(f"s_lshl_b32 s{S_TMP}, s{S_H}, 12"); srd(A, S_VS, K + 10, S_TMP, 4096); srd(A, S_VZ, S_TMP + 2, S_TMP, 4096)
        A(f"s_mov_b32 s{S_C}, {CFOLD:#x}"); A(f"s_mov_b32 s{S_C+1}, {CFOLD:#x}"); A(f"s_mov_b32 s{S_MASK}, 0xffff0000")
    if attn:
        A(f"s_mul_i32 s{S_TMP}, s{S_H}, 786432"); A(f"s_mul_i32 s{S_TMP+1}, s{S_J}, 98304"); A(f"s_add_u32 s{S_TMP}, s{S_TMP}, s{S_TMP+1}")
        srd(A, S_Q, K, S_TMP, 98304); srd(A, S_OUT, S_TMP + 4, S_TMP, 98304)
        srd(A, S_DBG, S_TMP + 6, None, 256)
def kd(name, vgpr=512, acc=256):
    return f""".amdhsa_kernel {name}
  .amdhsa_next_free_vgpr {vgpr}
  .amdhsa_next_free_sgpr 102
  .amdhsa_accum_offset {acc}
  .amdhsa_group_segment_fixed_size 0
  .amdhsa_kernarg_size 80
  .amdhsa_user_sgpr_count 2
  .amdhsa_user_sgpr_kernarg_segment_ptr 1
  .amdhsa_system_sgpr_workgroup_id_x 1
  .amdhsa_float_denorm_mode_32 3
.end_amdhsa_kernel
"""
def khead(name): return f".globl {name}\n.p2align 8\n.type {name},@function\n{name}:\n"

def gen_prepass():
    L = []; A = lambda t, **k: L.append(I(t, **k))
    A("s_cmp_ge_u32 s2, 2048"); A("s_cbranch_scc1 L_pp_end")
    A(f"s_and_b32 s{S_H}, s2, 7"); A(f"s_lshr_b32 s{S_TMP}, s2, 9"); A(f"s_lshl_b32 s{S_TMP}, s{S_TMP}, 3"); A(f"s_add_u32 s{S_H}, s{S_H}, s{S_TMP}")
    A(f"s_bfe_u32 s{S_J}, s2, 0x60003")
    load_ptrs_and_srds(A, prod=True, attn=False)
    prod_addr_setup(A, 4)
    set_ptile(A, S_J)
    A("v_mov_b32 v10, 0"); A("v_mov_b32 v11, 0")
    ku = [k_unit(i, 16 + 16 * i, 12) for i in range(3)]
    vu = v_unit(64, 96, 10)
    for u in ku + [vu]: L.extend(u[0])
    for u in ku + [vu]: L.extend(u[1]); L.extend(u[2])
    A("L_pp_end:"); A("s_endpgm")
    finalize([("pp", L)])
    return text(L)

def mf(d, a, b, c): return I(f"v_mfma_f32_16x16x32_bf16 {d}, {a}, {b}, {c}")
def k_read(slot, f):
    base = V_KA if slot < 2 else V_KB
    return I(f"ds_read_b128 {vr(V_K+4*f)}, v{base} offset:{(slot&1)*TILE + f*1024}")
def v_read(slot, db):
    base = V_VA if slot < 2 else V_VB
    return I(f"ds_read_b128 {vr(V_V+4*(db%6))}, v{base} offset:{(slot&1)*TILE + db*256}")
def dma_group(slot, flags=""):
    out = [I(f"s_add_u32 m0, s{S_W6144}, {slot*TILE}")]
    for k in range(4): out.append(I(f"buffer_load_dwordx4 v{V_D0}, {sr(S_WS)}, s{S_DMA} offen offset:{1024*k} lds{flags}", tag=f"dma{slot}"))
    out.append(I(f"s_add_u32 m0, s{S_W6144}, {slot*TILE+4096}"))
    for k in range(2): out.append(I(f"buffer_load_dwordx4 v{V_D1}, {sr(S_WS)}, s{S_DMA} offen offset:{1024*k} lds{flags}", tag=f"dma{slot}"))
    return out
def softmax_gaps(gaps, qb, g0):
    s0, s1, p = Sreg(qb, 0), Sreg(qb, 1), V_P + 4 * qb
    for r in range(4): gaps[g0 + 1 + r].append(I(f"v_exp_f32 v{s0+r}, v{s0+r}"))
    gaps[g0 + 5] += [I(f"v_cvt_pk_bf16_f32 v{p}, v{s0}, v{s0+1}"), I(f"v_cvt_pk_bf16_f32 v{p+1}, v{s0+2}, v{s0+3}")]
    for r in range(4): gaps[g0 + 6 + r].append(I(f"v_exp_f32 v{s1+r}, v{s1+r}"))
    gaps[g0 + 10] += [I(f"v_cvt_pk_bf16_f32 v{p+2}, v{s1}, v{s1+1}"), I(f"v_cvt_pk_bf16_f32 v{p+3}, v{s1+2}, v{s1+3}")]
BAR_GAP = 59
def iteration(slot, next_dma, extra=None, dmaflags=""):
    M = []
    for qb in range(4):
        for tb in range(2):
            for s in range(6):
                S = vr(Sreg(qb, tb))
                M.append(mf(S, Kreg(tb, s), Qreg(qb, s), vr(V_NM + 4 * qb) if s == 0 else S))
    def pv(db, qb): o = ar(Oreg(db, qb)); return mf(o, vr(V_V + 4 * (db % 6)), vr(V_P + 4 * qb), o)
    def on(qb): o = ar(Lreg(qb)); return mf(o, vr(V_ONES), vr(V_P + 4 * qb), o)
    for db in range(4):
        for qb in range(3): M.append(pv(db, qb))
    for qb in range(3): M.append(on(qb))
    for db in range(4): M.append(pv(db, 3))
    M.append(on(3))
    for db in range(4, 12):
        for qb in range(4): M.append(pv(db, qb))
    assert len(M) == 100
    gaps = [[] for _ in range(100)]
    for qb in range(4): softmax_gaps(gaps, qb, 12 * qb + 11)
    for db in range(6): gaps[1 + 2 * db].append(v_read(slot, db))
    nslot = (slot + 1) % 4
    gaps[BAR_GAP].append(I("s_barrier", waits=[f"dma{nslot}"]))
    dg = dma_group((slot + 3) % 4, dmaflags)
    g = BAR_GAP + 1
    gaps[g] += next_dma
    gaps[g].append(dg[0])
    pos = [61, 62, 63, 68, 'm', 69, 70]
    for ins, p in zip(dg[1:], pos):
        if p == 'm': gaps[68].append(ins)
        else: gaps[p].append(ins)
    vpos = {6: 64, 7: 65, 8: 66, 9: 67, 10: 72, 11: 76}
    for db, p in vpos.items(): gaps[p].append(v_read(slot, db))
    kpos = [71, 73, 74, 75, 77, 79, 81, 83, 85, 87, 89, 91]
    for f, p in enumerate(kpos): gaps[p].append(k_read(nslot, f))
    if extra: extra(gaps)
    L = []
    for m, g in zip(M, gaps): L.append(m); L.extend(g)
    return L

def attn_setup(A):
    A(f"s_mul_i32 s{S_W6144}, s{S_W}, 6144")
    A(f"v_lshlrev_b32 v{V_KA}, 4, v0"); A(f"v_add_u32 v{V_KB}, {2*TILE}, v{V_KA}")
    A("v_and_b32 v1, 15, v0"); A("v_lshrrev_b32 v2, 4, v0")
    A(f"v_mul_u32_u24 v{V_VA}, 3072, v2"); A(f"v_lshl_add_u32 v{V_VA}, v1, 4, v{V_VA}"); A(f"v_add_u32 v{V_VA}, 12288, v{V_VA}")
    A(f"v_add_u32 v{V_VB}, {2*TILE}, v{V_VA}")
    A(f"v_add_u32 v{V_D0}, s{S_W6144}, v{V_KA}"); A(f"v_add_u32 v{V_D1}, 4096, v{V_D0}")
    A(f"v_mul_u32_u24 v3, 384, v1"); A(f"v_lshl_add_u32 v3, v2, 4, v3")
    A(f"s_mul_i32 s{S_TMP}, s{S_W}, 24576")
    for qb in range(4):
        if qb: A(f"s_add_u32 s{S_TMP}, s{S_TMP}, 6144")
        for s in range(6): A(f"buffer_load_dwordx4 {Qreg(qb,s)}, v3, {sr(S_Q)}, s{S_TMP} offen offset:{64*s}")
    A("v_and_b32 v3, 3, v0"); A("v_cmp_eq_u32 vcc, 0, v3"); A(f"v_mov_b32 v3, 0x3f803f80")
    for r in range(4): A(f"v_cndmask_b32 v{V_ONES+r}, 0, v3, vcc")
def zero_acc(A):
    for i in range(208): A(f"v_accvgpr_write_b32 a{i}, 0")
def rowmax_to_negm(A, src, off):
    for qb in range(4):
        r = src(qb); t = V_P + 4 * qb
        A(f"v_max3_f32 v{t}, v{r[0]}, v{r[1]}, v{r[2]}") if len(r) > 1 else A(f"v_mov_b32 v{t}, v{r[0]}")
        if len(r) > 1: A(f"v_max_f32 v{t}, v{t}, v{r[3]}")
        A(f"v_mov_b32 v{t+1}, v{t}")
    for qb in range(4): t = V_P + 4 * qb; A(f"v_permlane32_swap_b32 v{t}, v{t+1}")
    for qb in range(4): t = V_P + 4 * qb; A(f"v_max_f32 v{t}, v{t}, v{t+1}"); A(f"v_mov_b32 v{t+1}, v{t}")
    for qb in range(4): t = V_P + 4 * qb; A(f"v_permlane16_swap_b32 v{t}, v{t+1}")
    for qb in range(4):
        t = V_P + 4 * qb; A(f"v_max_f32 v{t}, v{t}, v{t+1}")
        A(f"v_sub_f32 v{V_NM+4*qb}, {f2u(-off):#x}, v{t}")
        for r in range(1, 4): A(f"v_mov_b32 v{V_NM+4*qb+r}, v{V_NM+4*qb}")
def first_max(A):
    for qb in range(4):
        for s in range(6):
            S = vr(Sreg(qb, 0)); A(f"v_mfma_f32_16x16x32_bf16 {S}, {Kreg(0,s)}, {Qreg(qb,s)}, {'0' if s == 0 else S}")
    rowmax_to_negm(A, lambda qb: [Sreg(qb, 0) + r for r in range(4)], BOFF)
VOTE = 4 * TILE
def epilogue(A, stflags=""):
    RL = V_S
    for qb in range(4): A(f"v_accvgpr_read_b32 v{RL+4+qb}, a{Lreg(qb)}")
    for qb in range(4): A(f"v_rcp_f32 v{RL+qb}, v{RL+4+qb}")
    A(f"v_max_f32 v{RL+8}, v{RL+4}, v{RL+5}"); A(f"v_max3_f32 v{RL+8}, v{RL+8}, v{RL+6}, v{RL+7}")
    A(f"v_add_f32 v{RL+9}, v{RL+4}, v{RL+5}"); A(f"v_add_f32 v{RL+10}, v{RL+6}, v{RL+7}"); A(f"v_add_f32 v{RL+9}, v{RL+9}, v{RL+10}")
    A(f"v_cmp_nge_f32 vcc, 1.0, v{RL+8}"); A(f"v_cmp_u_f32 {sr(S_TMP,2)}, v{RL+9}, v{RL+9}")
    A(f"s_or_b64 vcc, vcc, {sr(S_TMP,2)}"); A(f"s_or_b32 s{S_TMP}, vcc_lo, vcc_hi")
    A(f"v_mov_b32 v{RL+8}, s{S_TMP}"); A(f"s_lshl_b32 s{S_TMP+1}, s{S_W}, 2"); A(f"s_add_u32 s{S_TMP+1}, s{S_TMP+1}, {VOTE}"); A(f"v_mov_b32 v{RL+9}, s{S_TMP+1}")
    A(f"ds_write_b32 v{RL+9}, v{RL+8}", tag="vote")
    A("v_and_b32 v1, 15, v0"); A("v_lshrrev_b32 v2, 4, v0"); A("v_mul_u32_u24 v3, 384, v1"); A("v_mul_u32_u24 v2, 24, v2"); A("v_add_u32 v3, v3, v2")
    A(f"s_mul_i32 s{S_TMP+2}, s{S_W}, 24576")
    T = V_K; k = 0
    for qb in range(4):
        if qb: A(f"s_add_u32 s{S_TMP+2}, s{S_TMP+2}, 6144")
        for e in range(4):
            t = T + (k % 3) * 16; k += 1
            for r in range(4):
                for j in range(3): A(f"v_accvgpr_read_b32 v{t+3*r+j}, a{Oreg(4*j+e, qb)+r}")
            for p in range(6): A(f"v_pk_mul_f32 {vr(t+2*p,2)}, {vr(t+2*p,2)}, {vr(RL+(qb&~1),2)} op_sel:[0,{qb&1}] op_sel_hi:[1,{qb&1}]")
            for p in range(6): A(f"v_cvt_pk_bf16_f32 v{t+p}, v{t+2*p}, v{t+2*p+1}")
            A(f"buffer_store_dwordx4 {vr(t)}, v3, {sr(S_OUT)}, s{S_TMP+2} offen offset:{96*e}{stflags}")
            A(f"buffer_store_dwordx2 {vr(t+4,2)}, v3, {sr(S_OUT)}, s{S_TMP+2} offen offset:{96*e+16}{stflags}")
def fallback_max(A):
    MX = V_V
    for qb in range(4): A(f"v_mov_b32 v{MX+qb}, 0xff800000")
    A(f"s_mov_b32 s{S_DMA}, 0")
    A("L_fb_loop:")
    for f in range(12):
        A(f"s_add_u32 s{S_TMP}, s{S_DMA}, {(f//4)*4096}")
        A(f"buffer_load_dwordx4 {vr(V_K+4*f)}, v{V_KA}, {sr(S_WS)}, s{S_TMP} offen offset:{(f%4)*1024} sc1")
    A("s_waitcnt vmcnt(0)")
    for qb in range(4):
        for tb in range(2):
            for s in range(6):
                S = vr(Sreg(qb, tb)); A(f"v_mfma_f32_16x16x32_bf16 {S}, {Kreg(tb,s)}, {Qreg(qb,s)}, {'0' if s == 0 else S}")
    for qb in range(4):
        for i in range(4): A(f"v_max3_f32 v{MX+qb}, v{MX+qb}, v{V_S+8*qb+2*i}, v{V_S+8*qb+2*i+1}")
    A(f"s_add_u32 s{S_DMA}, s{S_DMA}, {TILE}"); A(f"s_cmp_lt_u32 s{S_DMA}, {HEADWS}"); A("s_cbranch_scc1 L_fb_loop")
    rowmax_to_negm(A, lambda qb: [MX + qb], 0.0)

def gen_attn_phase1():
    P = []; A = lambda t, **k: P.append(I(t, **k))
    A("s_cmp_ge_u32 s2, 256"); A("s_cbranch_scc1 L_end")
    A(f"s_and_b32 s{S_H}, s2, 7"); A(f"s_lshr_b32 s{S_TMP}, s2, 6"); A(f"s_lshl_b32 s{S_TMP}, s{S_TMP}, 3"); A(f"s_add_u32 s{S_H}, s{S_H}, s{S_TMP}")
    A(f"s_bfe_u32 s{S_J}, s2, 0x30003")
    load_ptrs_and_srds(A, prod=False, attn=True)
    attn_setup(A)
    A(f"s_mov_b32 s{S_PASS}, 0")
    R = []; A = lambda t, **k: R.append(I(t, **k))
    A("L_restart:")
    A(f"s_mov_b32 s{S_DMA}, 0")
    for t in range(3):
        R.extend(dma_group(t)); A(f"s_add_u32 s{S_DMA}, s{S_DMA}, {TILE}")
    A(f"s_sub_u32 s{S_DMA}, s{S_DMA}, {TILE}")
    zero_acc(A)
    A("s_barrier", waits=["dma0"])
    for f in range(12): R.append(k_read(0, f))
    A(f"s_cmp_lg_u32 s{S_PASS}, 0"); A("s_cbranch_scc1 L_skipmax")
    F = []; A = lambda t, **k: F.append(I(t, **k))
    first_max(A)
    F2 = []; A = lambda t, **k: F2.append(I(t, **k))
    A("L_skipmax:"); A("s_waitcnt lgkmcnt(0)"); A(f"s_mov_b32 s{S_CNT}, 16"); A("s_nop 7")
    B = [I(".p2align 6"), I("L_loop:")]
    for slot in range(4): B += iteration(slot, [I(f"s_add_u32 s{S_DMA}, s{S_DMA}, {TILE}")])
    B += [I(f"s_sub_u32 s{S_CNT}, s{S_CNT}, 1"), I(f"s_cmp_lg_u32 s{S_CNT}, 0"), I("s_cbranch_scc1 L_loop")]
    E = []; A = lambda t, **k: E.append(I(t, **k))
    epilogue(A)
    A(f"v_mov_b32 v1, {VOTE}")
    A("s_barrier", waits=["vote"])
    A(f"ds_read_b128 {vr(V_S)}, v1")
    A(f"v_or3_b32 v1, v{V_S}, v{V_S+1}, v{V_S+2}"); A(f"v_or_b32 v1, v1, v{V_S+3}"); A(f"v_readfirstlane_b32 s{S_TMP}, v1")
    A(f"s_cmp_lg_u32 s{S_PASS}, 0"); A("s_cbranch_scc1 L_end")
    A(f"s_cmp_eq_u32 s{S_TMP}, 0"); A("s_cbranch_scc1 L_end")
    A("s_waitcnt vmcnt(0) lgkmcnt(0)")
    G = []; A = lambda t, **k: G.append(I(t, **k))
    fallback_max(A)
    A(f"s_mov_b32 s{S_PASS}, 1"); A("s_barrier"); A("s_branch L_restart")
    Z = [I("L_end:"), I("s_endpgm")]
    n = finalize([("P", P), ("R", R), ("F", F), ("F2", F2), ("B", B), ("B", B), ("E", E), ("G", G), ("G", G), ("R", R), ("F2", F2), ("B", B)])
    print("nops inserted", n, "loop instrs", len(B), file=sys.stderr)
    return "".join(text(x) for x in (P, R, F, F2, B, E, G, Z))

def file_phase1():
    s = HDR
    s += f"; @launch kernel=prepass_kernel grid=(2048,1,1) block=(256,1,1) lds=0\n"
    s += f"; @launch kernel={NAME}_kernel grid=(256,1,1) block=(256,1,1) lds={VOTE+64}\n"
    s += '.amdgcn_target "amdgcn-amd-amdhsa--gfx950"\n.text\n'
    s += khead("prepass_kernel") + gen_prepass()
    s += khead(NAME + "_kernel") + gen_attn_phase1()
    s += '.section .rodata,"a"\n.p2align 6\n' + kd("prepass_kernel", 128, 128) + ".p2align 6\n" + kd(NAME + "_kernel")
    return s
if __name__ == "__main__":
    open(sys.argv[1], "w").write(file_phase1())
```

```python
import re
TRANS = ("v_exp_f32", "v_log_f32", "v_rcp_f32", "v_rsq_f32", "v_sqrt_f32", "v_sin_f32", "v_cos_f32")
REG = re.compile(r"^(-?\|?)([vas])(\d+)\|?$|^(-?\|?)([vas])\[(\d+):(\d+)\]\|?$")
def regs_of(tok):
    tok = tok.strip()
    if tok in ("vcc", "exec", "m0", "scc"): return [tok]
    if tok in ("vcc_lo", "vcc_hi"): return ["vcc"]
    if tok in ("exec_lo", "exec_hi"): return ["exec"]
    m = REG.match(tok)
    if not m: return []
    if m.group(2): return [(m.group(2), int(m.group(3)))]
    return [(m.group(5), i) for i in range(int(m.group(6)), int(m.group(7)) + 1)]
class I:
    __slots__ = ("text", "op", "kind", "rd", "wr", "C", "AB", "tag", "waits", "wide", "note")
    def __init__(self, text, tag=None, waits=(), note=None):
        self.text = text; self.tag = tag; self.waits = tuple(waits); self.note = note
        t = text.split(";")[0].strip()
        self.C = []; self.AB = []; self.wide = False
        if t.endswith(":") or t.startswith(".") or not t:
            self.op = ""; self.kind = "label"; self.rd = []; self.wr = []; return
        parts = t.split(None, 1); op = parts[0]; self.op = op
        rest = parts[1] if len(parts) > 1 else ""
        ops = [o.strip() for o in rest.split(",")] if rest else []
        mods = ""
        if ops:
            sp = ops[-1].split(None, 1)
            ops[-1] = sp[0]; mods = sp[1] if len(sp) > 1 else ""
        clean = []
        for o in ops:
            clean.append(o.split(None, 1)[0] if o else o)
        R = [regs_of(o) for o in clean]
        flat = lambda L: [r for x in L for r in x]
        rd = []; wr = []
        if op.startswith("v_mfma"):
            k = "mfma"; wr = R[0]; rd = flat(R[1:4]); self.C = R[3]; self.AB = R[1] + R[2]
        elif op.startswith("v_cmp"):
            k = "valu"; wr = R[0]; rd = flat(R[1:])
        elif op.startswith("v_permlane") and "swap" in op:
            k = "valu"; wr = R[0] + R[1]; rd = R[0] + R[1]
        elif op.startswith("v_"):
            k = "trans" if op.replace("_e32", "").replace("_e64", "") in TRANS else "valu"
            wr = R[0]; rd = flat(R[1:])
            if op.startswith(("v_fmac", "v_mac", "v_writelane")): rd += R[0]
            if op.startswith("v_cndmask") and len(clean) == 3: rd += ["vcc"]
        elif op.startswith("buffer_load") or op.startswith("global_load"):
            if re.search(r"\blds\b", rest): k = "dma"; rd = flat(R) + ["m0"]
            else: k = "vload"; wr = R[0]; rd = flat(R[1:])
        elif op.startswith("buffer_store") or op.startswith("global_store"):
            k = "vstore"; rd = flat(R); self.wide = op.endswith(("x3", "x4"))
        elif op.startswith("buffer_atomic") or op.startswith("global_atomic"):
            k = "vatomic"; rd = flat(R)
            if re.search(r"\bsc0\b", rest): wr = R[0]
        elif op.startswith(("buffer_inv", "buffer_wbl2")):
            k = "vmisc"
        elif op.startswith(("ds_read", "ds_bpermute", "ds_swizzle")):
            k = "lds"; wr = R[0]; rd = flat(R[1:])
        elif op.startswith("ds_write"):
            k = "lds"; rd = flat(R)
        elif op.startswith("s_load") or op.startswith("s_memtime") or op.startswith("s_memrealtime"):
            k = "smem"; wr = R[0]; rd = flat(R[1:])
        elif op in ("s_waitcnt", "s_barrier", "s_nop", "s_setprio", "s_endpgm", "s_sleep", "s_branch"):
            k = "ctl"
        elif op.startswith("s_cbranch"):
            k = "ctl"; rd = ["vcc"] if "vcc" in op else (["exec"] if "exec" in op else ["scc"])
        elif op.startswith("s_cmp") or op.startswith("s_bitcmp"):
            k = "salu"; rd = flat(R); wr = ["scc"]
        elif op.startswith("s_"):
            k = "salu"; wr = R[0] + ["scc"]; rd = flat(R[1:])
            if "saveexec" in op: wr += ["exec"]; rd += ["exec"]
            if op.startswith(("s_addc", "s_subb", "s_cselect")): rd += ["scc"]
        else:
            raise ValueError("unknown op " + text)
        self.kind = k; self.rd = rd; self.wr = wr
    def states(self):
        if self.kind == "label": return 0
        if self.op == "s_nop": return int(self.text.split()[1]) + 1
        return 1
VM = ("vload", "vstore", "dma", "vatomic", "vmisc")
def insert_waits(segs, verbose=False):
    need = {}
    vmq = []
    lgq = []
    for name, L in segs:
        nd = need.setdefault(id(L), {})
        for pos, ins in enumerate(L):
            vm = None; lg = None
            touched = set(ins.rd) | set(ins.wr)
            if ins.op == "s_waitcnt":
                m = re.search(r"vmcnt\((\d+)\)", ins.text)
                if m: vmq = vmq[len(vmq) - int(m.group(1)):] if int(m.group(1)) < len(vmq) else vmq
                if m and int(m.group(1)) == 0: vmq = []
                m = re.search(r"lgkmcnt\((\d+)\)", ins.text)
                if m:
                    n = int(m.group(1))
                    if n == 0: lgq = []
                    elif n < len(lgq) and not any(x.kind == "smem" for x in lgq): lgq = lgq[len(lgq) - n:]
                continue
            for i, o in enumerate(vmq):
                if (set(o.wr) & touched) or (o.tag is not None and o.tag in ins.waits):
                    c = len(vmq) - 1 - i
                    vm = c if vm is None else min(vm, c)
            for i, o in enumerate(lgq):
                if (set(o.wr) & touched) or (o.tag is not None and o.tag in ins.waits):
                    c = len(lgq) - 1 - i
                    if any(x.kind == "smem" for x in lgq): c = 0
                    lg = c if lg is None else min(lg, c)
            old = nd.get(pos, (None, None))
            if old[0] is not None: vm = old[0] if vm is None else min(vm, old[0])
            if old[1] is not None: lg = old[1] if lg is None else min(lg, old[1])
            if vm is not None: vm = min(vm, 63)
            if lg is not None: lg = min(lg, 15)
            if vm is not None or lg is not None: nd[pos] = (vm, lg)
            if vm is not None: vmq = vmq[len(vmq) - vm:] if vm > 0 else []
            if lg is not None: lgq = lgq[len(lgq) - lg:] if lg > 0 else []
            if ins.kind in VM: vmq.append(ins)
            if ins.kind in ("lds", "smem"): lgq.append(ins)
    return need
def apply_waits(L, nd):
    out = []
    for pos, ins in enumerate(L):
        if pos in nd:
            vm, lg = nd[pos]
            s = "s_waitcnt" + (f" vmcnt({vm})" if vm is not None else "") + (f" lgkmcnt({lg})" if lg is not None else "")
            out.append(I(s))
        out.append(ins)
    L[:] = out
def isv(r): return isinstance(r, tuple) and r[0] in "va"
def iss(r): return r == "vcc" or (isinstance(r, tuple) and r[0] == "s")
def required(p, c):
    n = 0
    pw = set(p.wr); cr = set(c.rd); cw = set(c.wr)
    VAL = ("valu", "trans")
    MEM = VM + ("lds",)
    if p.kind == "mfma":
        if c.kind == "mfma":
            if pw & set(c.AB): n = max(n, 8)
            ov = pw & set(c.C)
            if ov and list(c.C) != list(p.wr): n = max(n, 6)
            if (pw & cw) and list(c.C) != list(p.wr): n = max(n, 6)
        elif c.kind in VAL or c.kind in MEM:
            if pw & (cr | cw): n = max(n, 8)
        if c.kind in VAL and set(p.C) & cw: n = max(n, 3)
    if p.kind in VAL:
        vw = {r for r in pw if isv(r)}; sw = {r for r in pw if iss(r)}
        if c.kind == "mfma" and vw & cr: n = max(n, 2)
        if c.kind == "mfma" and "exec" in pw: n = max(n, 4)
        if p.kind == "trans" and c.kind in VAL + MEM + ("mfma",) and vw & cr: n = max(n, 1 if c.kind != "mfma" else 2)
        if c.kind in VAL and sw & cr: n = max(n, 4 if c.op.startswith(("v_readlane", "v_writelane")) else 2)
        if c.kind in VM and sw & cr: n = max(n, 5)
        if c.op.startswith(("v_readlane", "v_readfirstlane")) and vw & cr: n = max(n, 1)
        if ("dpp" in c.text or "row_" in c.text or c.op.startswith("v_permlane")) and c.kind in VAL and vw & cr: n = max(n, 2)
        if "op_sel" in p.text and not p.op.startswith("v_pk") and c.kind in VAL and vw & cr: n = max(n, 1)
        if c.kind == "salu" and sw & cr: n = max(n, 1)
    if p.kind == "salu" and "m0" in pw and c.kind == "dma": n = max(n, 1)
    if p.kind == "vstore" and p.wide:
        data = set(regs_of(p.text.split(None, 1)[1].split(",")[0]))
        if data & cw: n = max(n, 2)
    return n
def pad_hazards(segs):
    changed = True; total = 0
    while changed:
        changed = False
        hist = []
        for name, L in segs:
            pos = 0
            while pos < len(L):
                c = L[pos]
                if c.kind == "label": pos += 1; continue
                dist = 0; need = 0
                for p in reversed(hist[-24:]):
                    r = required(p, c)
                    if r > dist: need = max(need, r - dist)
                    dist += p.states()
                    if dist >= 10: break
                if need > 0:
                    nop = I(f"s_nop {need - 1}")
                    L.insert(pos, nop); hist.append(nop); pos += 1; changed = True; total += 1
                hist.append(c); pos += 1
    return total
def finalize(*paths):
    for rnd in range(6):
        any_new = False
        for segs in paths:
            nd = insert_waits(segs)
            done = set()
            for name, L in segs:
                if id(L) in done: continue
                done.add(id(L))
                if nd.get(id(L)): any_new = True; apply_waits(L, nd[id(L)])
        if not any_new: break
    else: raise RuntimeError("waits did not converge")
    tot = 0
    for rnd in range(4):
        n = sum(pad_hazards(segs) for segs in paths); tot += n
        if n == 0: break
    return tot
def text(L): return "\n".join(("" if i.kind == "label" else "  ") + i.text for i in L) + "\n"
```

```python
import sys, math, struct
sys.path.insert(0, "dev")
from emit import *
NAME = "standalone__kv_cache_quant_int4_int2_kv_with_per_channel_or_per_token_scales__prompt"
def f2u(x): return struct.unpack("<I", struct.pack("<f", x))[0]
CFOLD = f2u(192 ** -0.5 * math.log2(math.e))
BOFF = 40.0
TILE = 24576; HEADWS = 64 * TILE
HDR = open("cdna_kernels/" + NAME + ".s.ref").read().split("; Override launch geometry")[0]

S_WS = 4
S_Q = 8
S_QK = 12; S_QV = 16; S_KS = 20; S_KZ = 24; S_VS = 28; S_VZ = 32
S_W = 36
S_W6144 = 37
S_H = 38; S_J = 39
S_DMA = 40
S_CNT = 41
S_C = 42
S_MASK = 44
S_PT768 = 45
S_PT384 = 46
S_PT64 = 47
S_PTW = 48
S_TMP = 50
S_VZS = 60
S_VSS = 68
S_PASS = 76
S_OUT = 80
S_DBG = 84
S_KARG = 88
V_KA, V_KB, V_VA, V_VB, V_D0, V_D1 = 4, 5, 6, 7, 8, 9
V_ONES = 12; V_Q = 16; V_K = 64; V_V = 112; V_S = 136; V_NM = 168; V_P = 184; V_PR = 200
def vr(b, n=4): return f"v[{b}:{b+n-1}]"
def ar(b, n=4): return f"a[{b}:{b+n-1}]"
def sr(b, n=4): return f"s[{b}:{b+n-1}]"
def Qreg(qb, s): return vr(V_Q + (qb * 6 + s) * 4) if qb < 2 else ar(208 + ((qb - 2) * 6 + s) * 4)
def Kreg(tb, s): return vr(V_K + (tb * 6 + s) * 4)
def Sreg(qb, tb): return V_S + qb * 8 + tb * 4
def Oreg(db, qb): return (db * 4 + qb) * 4
def Lreg(qb): return 192 + qb * 4

def srd(A, d, ptr, off_lo=None, nrec=0):
    if off_lo is None:
        A(f"s_mov_b32 s{d}, s{ptr}"); A(f"s_mov_b32 s{d+1}, s{ptr+1}")
    else:
        A(f"s_add_u32 s{d}, s{ptr}, s{off_lo}"); A(f"s_addc_u32 s{d+1}, s{ptr+1}, 0")
    A(f"s_mov_b32 s{d+2}, {nrec}"); A(f"s_mov_b32 s{d+3}, 0x00020000")

class PA:
    kld = 0; ksc = 0; kst = 0; vld = 0; vsc = 0; vst = 0
def prod_addr_setup(A, base):
    PA.kld, PA.ksc, PA.kst, PA.vld, PA.vsc, PA.vst = range(base, base + 6)
    A("v_and_b32 v1, 15, v0"); A("v_lshrrev_b32 v2, 4, v0")
    A(f"v_mul_u32_u24 v{PA.kld}, 768, v1"); A(f"v_lshl_add_u32 v{PA.kld}, v2, 5, v{PA.kld}")
    A(f"v_lshlrev_b32 v{PA.ksc}, 4, v2")
    A(f"s_mul_i32 s{S_TMP}, s{S_W}, 3072")
    A(f"v_lshlrev_b32 v{PA.kst}, 4, v0"); A(f"v_add_u32 v{PA.kst}, s{S_TMP}, v{PA.kst}")
    A(f"v_add_u32 v{PA.vst}, 12288, v{PA.kst}")
    A(f"v_mul_u32_u24 v{PA.vld}, 12, v0"); A(f"v_add_u32 v{PA.vld}, s{S_TMP}, v{PA.vld}")
    A("v_and_b32 v1, 3, v0"); A("v_bfe_u32 v2, v0, 2, 1"); A("v_lshlrev_b32 v2, 5, v2"); A("v_lshl_add_u32 v1, v1, 1, v2")
    A(f"s_lshl_b32 s{S_TMP}, s{S_W}, 3"); A(f"v_add_u32 v{PA.vsc}, s{S_TMP}, v1")
    A(f"s_lshr_b32 s{S_TMP}, s{S_W}, 1"); A(f"s_mul_i32 s{S_TMP}, s{S_TMP}, {16*768}")
    A(f"s_and_b32 s{S_TMP+1}, s{S_W}, 1"); A(f"s_mul_i32 s{S_TMP+2}, s{S_TMP+1}, 384"); A(f"s_add_u32 s{S_TMP}, s{S_TMP}, s{S_TMP+2}")
    A(f"v_add_u32 v{PA.kld}, s{S_TMP}, v{PA.kld}")
    A(f"s_mul_i32 s{S_TMP+2}, s{S_TMP+1}, 192"); A(f"v_add_u32 v{PA.ksc}, s{S_TMP+2}, v{PA.ksc}")
def rnd(d, s): return f"v_cvt_pk_bf16_f32 v{d}, 0, v{s}"
def k_unit(i, R, T, stflags=""):
    ld = [I(f"buffer_load_dwordx4 {vr(R)}, v{PA.kld}, {sr(S_QK)}, s{S_PT768} offen offset:{128*i}"),
          I(f"buffer_load_dwordx4 {vr(R+4)}, v{PA.kld}, {sr(S_QK)}, s{S_PT768} offen offset:{128*i+16}"),
          I(f"buffer_load_dwordx4 {vr(R+8)}, v{PA.ksc}, {sr(S_KZ)}, s{S_PT384} offen offset:{64*i}"),
          I(f"buffer_load_dwordx4 {vr(R+12)}, v{PA.ksc}, {sr(S_KS)}, s{S_PT384} offen offset:{64*i}")]
    c = []
    for p in range(4):
        a, b = R + 2 * p, R + 2 * p + 1; z = R + 8 + p; s = R + 12 + p
        c += [f"v_cvt_f32_i32 v{a}, v{a}", f"v_cvt_f32_i32 v{b}, v{b}",
              f"v_lshlrev_b32 v{T}, 16, v{z}", f"v_and_b32 v{T+1}, s{S_MASK}, v{z}",
              rnd(a, a), rnd(b, b),
              f"v_lshlrev_b32 v{T+2}, 16, v{s}", f"v_and_b32 v{T+3}, s{S_MASK}, v{s}",
              f"v_pk_add_f32 {vr(a,2)}, {vr(a,2)}, {vr(T,2)} neg_lo:[0,1] neg_hi:[0,1]",
              f"v_pk_mul_f32 {vr(T+2,2)}, {vr(T+2,2)}, {sr(S_C,2)}",
              rnd(a, a), rnd(b, b),
              f"v_pk_mul_f32 {vr(a,2)}, {vr(a,2)}, {vr(T+2,2)}",
              f"v_cvt_pk_bf16_f32 v{z}, v{a}, v{b}"]
    st = [I(f"buffer_store_dwordx4 {vr(R+8)}, v{PA.kst}, {sr(S_WS)}, s{S_PTW} offen offset:{1024*i}{stflags}", tag="pst")]
    return ld, [I(x) for x in c], st
def v_unit(R, X, Z, stflags=""):
    ld = [I(f"buffer_load_short_d16_hi v{Z}, v{PA.vsc}, {sr(S_VZ)}, s{S_PT64} offen"),
          I(f"buffer_load_short_d16_hi v{Z+1}, v{PA.vsc}, {sr(S_VS)}, s{S_PT64} offen")]
    for t in range(8):
        if t < 4: ld.append(I(f"buffer_load_dwordx3 {vr(R+4*t,3)}, v{PA.vld}, {sr(S_QV)}, s{S_PT768} offen offset:{768*t}"))
        else: ld.append(I(f"buffer_load_dwordx3 {vr(R+4*t,3)}, v{PA.vld}, {sr(S_QV)}, s{S_PT768+4} offen offset:{768*(t-4)}"))
    c = []
    for t in range(8): c.append(f"v_readlane_b32 s{S_VZS+t}, v{Z}, {t}")
    for t in range(8): c.append(f"v_readlane_b32 s{S_VSS+t}, v{Z+1}, {t}")
    out = [R, R + 4, X]
    for u in range(4):
        g = R + 8 * u
        c += [f"v_cvt_f32_i32 v{g+7}, v{g+6}", f"v_cvt_f32_i32 v{g+6}, v{g+2}", f"v_cvt_f32_i32 v{g+2}, v{g+1}",
              f"v_cvt_f32_i32 v{g+3}, v{g+5}", f"v_cvt_f32_i32 v{g+1}, v{g+4}", f"v_cvt_f32_i32 v{g}, v{g}"]
        pr = [g, g + 2, g + 6]
        for p in (pr[2], pr[1], pr[0]): c += [rnd(p, p), rnd(p + 1, p + 1)]
        for p in (pr[2], pr[1], pr[0]): c.append(f"v_pk_add_f32 {vr(p,2)}, {vr(p,2)}, {sr(S_VZS+2*u,2)} neg_lo:[0,1] neg_hi:[0,1]")
        for p in (pr[2], pr[1], pr[0]): c += [rnd(p, p), rnd(p + 1, p + 1)]
        for p in (pr[2], pr[1], pr[0]): c.append(f"v_pk_mul_f32 {vr(p,2)}, {vr(p,2)}, {sr(S_VSS+2*u,2)}")
        for j in (2, 1, 0): c.append(f"v_cvt_pk_bf16_f32 v{out[j]+u}, v{pr[j]}, v{pr[j]+1}")
    st = [I(f"buffer_store_dwordx4 {vr(out[j])}, v{PA.vst}, {sr(S_WS)}, s{S_PTW} offen offset:{1024*j}{stflags}", tag="pst") for j in range(3)]
    return ld, [I(x) for x in c], st
S_PT768B = S_PT768 + 4
def set_ptile(A, st):
    A(f"s_mul_i32 s{S_PT768}, s{st}, {32*768}"); A(f"s_add_u32 s{S_PT768B}, s{S_PT768}, {16*768}")
    A(f"s_mul_i32 s{S_PT384}, s{st}, 384"); A(f"s_lshl_b32 s{S_PT64}, s{st}, 6"); A(f"s_mul_i32 s{S_PTW}, s{st}, {TILE}")
def load_ptrs_and_srds(A, prod=True, attn=True):
    K = S_KARG
    A(f"s_load_dwordx4 {sr(K)}, s[0:1], 0"); A(f"s_load_dwordx4 {sr(K+4)}, s[0:1], 16"); A(f"s_load_dwordx4 {sr(K+8)}, s[0:1], 32")
    A(f"s_load_dwordx4 {sr(S_TMP+2)}, s[0:1], 48"); A(f"s_load_dwordx4 {sr(S_TMP+6)}, s[0:1], 64")
    A("v_lshrrev_b32 v1, 6, v0"); A("v_and_b32 v0, 63, v0"); A(f"v_readfirstlane_b32 s{S_W}, v1")
    A(f"s_mul_i32 s{S_TMP}, s{S_H}, {HEADWS}")
    A("s_waitcnt lgkmcnt(0)")
    srd(A, S_WS, S_TMP + 8, S_TMP, HEADWS)
    if prod:
        srd(A, S_QK, K + 2, S_TMP, HEADWS); srd(A, S_QV, K + 4, S_TMP, HEADWS)
        A(f"s_mul_i32 s{S_TMP}, s{S_H}, 24576"); srd(A, S_KS, K + 6, S_TMP, 24576); srd(A, S_KZ, K + 8, S_TMP, 24576)
        A(f"s_lshl_b32 s{S_TMP}, s{S_H}, 12"); srd(A, S_VS, K + 10, S_TMP, 4096); srd(A, S_VZ, S_TMP + 2, S_TMP, 4096)
        A(f"s_mov_b32 s{S_C}, {CFOLD:#x}"); A(f"s_mov_b32 s{S_C+1}, {CFOLD:#x}"); A(f"s_mov_b32 s{S_MASK}, 0xffff0000")
    if attn:
        A(f"s_mul_i32 s{S_TMP}, s{S_H}, 786432"); A(f"s_mul_i32 s{S_TMP+1}, s{S_J}, 98304"); A(f"s_add_u32 s{S_TMP}, s{S_TMP}, s{S_TMP+1}")
        srd(A, S_Q, K, S_TMP, 98304); srd(A, S_OUT, S_TMP + 4, S_TMP, 98304)
        srd(A, S_DBG, S_TMP + 6, None, 256)
def kd(name, vgpr=512, acc=256):
    return f""".amdhsa_kernel {name}
  .amdhsa_next_free_vgpr {vgpr}
  .amdhsa_next_free_sgpr 102
  .amdhsa_accum_offset {acc}
  .amdhsa_group_segment_fixed_size 0
  .amdhsa_kernarg_size 80
  .amdhsa_user_sgpr_count 2
  .amdhsa_user_sgpr_kernarg_segment_ptr 1
  .amdhsa_system_sgpr_workgroup_id_x 1
  .amdhsa_float_denorm_mode_32 3
.end_amdhsa_kernel
"""
def khead(name): return f".globl {name}\n.p2align 8\n.type {name},@function\n{name}:\n"

def gen_prepass():
    L = []; A = lambda t, **k: L.append(I(t, **k))
    A("s_cmp_ge_u32 s2, 2048"); A("s_cbranch_scc1 L_pp_end")
    A(f"s_and_b32 s{S_H}, s2, 7"); A(f"s_lshr_b32 s{S_TMP}, s2, 9"); A(f"s_lshl_b32 s{S_TMP}, s{S_TMP}, 3"); A(f"s_add_u32 s{S_H}, s{S_H}, s{S_TMP}")
    A(f"s_bfe_u32 s{S_J}, s2, 0x60003")
    load_ptrs_and_srds(A, prod=True, attn=False)
    prod_addr_setup(A, 4)
    set_ptile(A, S_J)
    A("v_mov_b32 v10, 0"); A("v_mov_b32 v11, 0")
    ku = [k_unit(i, 16 + 16 * i, 12) for i in range(3)]
    vu = v_unit(64, 96, 10)
    for u in ku + [vu]: L.extend(u[0])
    for u in ku + [vu]: L.extend(u[1]); L.extend(u[2])
    A("L_pp_end:"); A("s_endpgm")
    finalize([("pp", L)])
    return text(L)

PROF = False
S_PROF = 78
S_TS = 92
def stamp(A, i):
    if not PROF: return
    A(f"s_memrealtime {sr(S_PROF,2)}"); A("s_waitcnt lgkmcnt(0)"); A(f"s_mov_b32 s{S_TS+i}, s{S_PROF}")
def stamps_out(A):
    if not PROF: return
    A(f"s_load_dwordx2 {sr(S_TMP+2,2)}, s[0:1], 72"); A("s_waitcnt lgkmcnt(0)")
    A(f"s_mov_b32 s{S_TMP}, {200*1024*1024}"); srd(A, S_Q, S_TMP + 2, S_TMP, 1 << 20)
    for i in range(8): A(f"v_mov_b32 v{16+i}, s{S_TS+i}")
    A(f"s_lshl_b32 s{S_TMP}, s2, 2"); A(f"s_add_u32 s{S_TMP}, s{S_TMP}, s{S_W}"); A(f"s_lshl_b32 s{S_TMP}, s{S_TMP}, 5"); A("v_mov_b32 v1, 0")
    A(f"buffer_store_dwordx4 v[16:19], v1, {sr(S_Q)}, s{S_TMP} offen"); A(f"buffer_store_dwordx4 v[20:23], v1, {sr(S_Q)}, s{S_TMP} offen offset:16")
def mf(d, a, b, c): return I(f"v_mfma_f32_16x16x32_bf16 {d}, {a}, {b}, {c}")
def k_read(slot, f):
    base = V_KA if slot < 2 else V_KB
    return I(f"ds_read_b128 {vr(V_K+4*f)}, v{base} offset:{(slot&1)*TILE + f*1024}")
def v_read(slot, db):
    base = V_VA if slot < 2 else V_VB
    return I(f"ds_read_b128 {vr(V_V+4*(db%6))}, v{base} offset:{(slot&1)*TILE + db*256}")
def dma_group(slot, flags=""):
    out = [I(f"s_add_u32 m0, s{S_W6144}, {slot*TILE}")]
    for k in range(4): out.append(I(f"buffer_load_dwordx4 v{V_D0}, {sr(S_WS)}, s{S_DMA} offen offset:{1024*k} lds{flags}", tag=f"dma{slot}"))
    out.append(I(f"s_add_u32 m0, s{S_W6144}, {slot*TILE+4096}"))
    for k in range(2): out.append(I(f"buffer_load_dwordx4 v{V_D1}, {sr(S_WS)}, s{S_DMA} offen offset:{1024*k} lds{flags}", tag=f"dma{slot}"))
    return out
def softmax_gaps(gaps, qb, g0):
    s0, s1, p = Sreg(qb, 0), Sreg(qb, 1), V_P + 4 * qb
    for r in range(4): gaps[g0 + 1 + r].append(I(f"v_exp_f32 v{s0+r}, v{s0+r}"))
    gaps[g0 + 5] += [I(f"v_cvt_pk_bf16_f32 v{p}, v{s0}, v{s0+1}"), I(f"v_cvt_pk_bf16_f32 v{p+1}, v{s0+2}, v{s0+3}")]
    for r in range(4): gaps[g0 + 6 + r].append(I(f"v_exp_f32 v{s1+r}, v{s1+r}"))
    gaps[g0 + 10] += [I(f"v_cvt_pk_bf16_f32 v{p+2}, v{s1}, v{s1+1}"), I(f"v_cvt_pk_bf16_f32 v{p+3}, v{s1+2}, v{s1+3}")]
BAR_GAP = 59
def iteration(slot, next_dma, extra=None, dmaflags=""):
    M = []
    for qb in range(4):
        for tb in range(2):
            for s in range(6):
                S = vr(Sreg(qb, tb))
                M.append(mf(S, Kreg(tb, s), Qreg(qb, s), vr(V_NM + 4 * qb) if s == 0 else S))
    def pv(db, qb): o = ar(Oreg(db, qb)); return mf(o, vr(V_V + 4 * (db % 6)), vr(V_P + 4 * qb), o)
    def on(qb): o = ar(Lreg(qb)); return mf(o, vr(V_ONES), vr(V_P + 4 * qb), o)
    for db in range(4):
        for qb in range(3): M.append(pv(db, qb))
    for qb in range(3): M.append(on(qb))
    for db in range(4): M.append(pv(db, 3))
    M.append(on(3))
    for db in range(4, 12):
        for qb in range(4): M.append(pv(db, qb))
    assert len(M) == 100
    gaps = [[] for _ in range(100)]
    for qb in range(4): softmax_gaps(gaps, qb, 12 * qb + 11)
    for db in range(6): gaps[1 + 2 * db].append(v_read(slot, db))
    nslot = (slot + 1) % 4
    gaps[BAR_GAP].append(I("s_barrier", waits=[f"dma{nslot}"]))
    dg = dma_group((slot + 3) % 4, dmaflags)
    g = BAR_GAP + 1
    gaps[g] += next_dma
    gaps[g].append(dg[0])
    pos = [61, 62, 63, 68, 'm', 69, 70]
    for ins, p in zip(dg[1:], pos):
        if p == 'm': gaps[68].append(ins)
        else: gaps[p].append(ins)
    vpos = {6: 64, 7: 65, 8: 66, 9: 67, 10: 72, 11: 76}
    for db, p in vpos.items(): gaps[p].append(v_read(slot, db))
    kpos = [71, 73, 74, 75, 77, 79, 81, 83, 85, 87, 89, 91]
    for f, p in enumerate(kpos): gaps[p].append(k_read(nslot, f))
    if extra: extra(gaps)
    L = []
    for m, g in zip(M, gaps): L.append(m); L.extend(g)
    return L

def attn_setup(A):
    A(f"s_mul_i32 s{S_W6144}, s{S_W}, 6144")
    A(f"v_lshlrev_b32 v{V_KA}, 4, v0"); A(f"v_add_u32 v{V_KB}, {2*TILE}, v{V_KA}")
    A("v_and_b32 v1, 15, v0"); A("v_lshrrev_b32 v2, 4, v0")
    A(f"v_mul_u32_u24 v{V_VA}, 3072, v2"); A(f"v_lshl_add_u32 v{V_VA}, v1, 4, v{V_VA}"); A(f"v_add_u32 v{V_VA}, 12288, v{V_VA}")
    A(f"v_add_u32 v{V_VB}, {2*TILE}, v{V_VA}")
    A(f"v_add_u32 v{V_D0}, s{S_W6144}, v{V_KA}"); A(f"v_add_u32 v{V_D1}, 4096, v{V_D0}")
    A(f"v_mul_u32_u24 v3, 384, v1"); A(f"v_lshl_add_u32 v3, v2, 4, v3")
    A(f"s_mul_i32 s{S_TMP}, s{S_W}, 24576")
    for qb in range(4):
        if qb: A(f"s_add_u32 s{S_TMP}, s{S_TMP}, 6144")
        for s in range(6): A(f"buffer_load_dwordx4 {Qreg(qb,s)}, v3, {sr(S_Q)}, s{S_TMP} offen offset:{64*s}")
    A("v_and_b32 v3, 3, v0"); A("v_cmp_eq_u32 vcc, 0, v3"); A(f"v_mov_b32 v3, 0x3f803f80")
    for r in range(4): A(f"v_cndmask_b32 v{V_ONES+r}, 0, v3, vcc")
def zero_acc(A):
    for i in range(208): A(f"v_accvgpr_write_b32 a{i}, 0")
def rowmax_to_negm(A, src, off):
    for qb in range(4):
        r = src(qb); t = V_P + 4 * qb
        A(f"v_max3_f32 v{t}, v{r[0]}, v{r[1]}, v{r[2]}") if len(r) > 1 else A(f"v_mov_b32 v{t}, v{r[0]}")
        if len(r) > 1: A(f"v_max_f32 v{t}, v{t}, v{r[3]}")
        A(f"v_mov_b32 v{t+1}, v{t}")
    for qb in range(4): t = V_P + 4 * qb; A(f"v_permlane32_swap_b32 v{t}, v{t+1}")
    for qb in range(4): t = V_P + 4 * qb; A(f"v_max_f32 v{t}, v{t}, v{t+1}"); A(f"v_mov_b32 v{t+1}, v{t}")
    for qb in range(4): t = V_P + 4 * qb; A(f"v_permlane16_swap_b32 v{t}, v{t+1}")
    for qb in range(4):
        t = V_P + 4 * qb; A(f"v_max_f32 v{t}, v{t}, v{t+1}")
        A(f"v_sub_f32 v{V_NM+4*qb}, {f2u(-off):#x}, v{t}")
        for r in range(1, 4): A(f"v_mov_b32 v{V_NM+4*qb+r}, v{V_NM+4*qb}")
def first_max(A):
    for qb in range(4):
        for s in range(6):
            S = vr(Sreg(qb, 0)); A(f"v_mfma_f32_16x16x32_bf16 {S}, {Kreg(0,s)}, {Qreg(qb,s)}, {'0' if s == 0 else S}")
    rowmax_to_negm(A, lambda qb: [Sreg(qb, 0) + r for r in range(4)], BOFF)
VOTE = 4 * TILE
def epilogue(A, stflags=""):
    RL = V_S
    for qb in range(4): A(f"v_accvgpr_read_b32 v{RL+4+qb}, a{Lreg(qb)}")
    for qb in range(4): A(f"v_rcp_f32 v{RL+qb}, v{RL+4+qb}")
    A(f"v_max_f32 v{RL+8}, v{RL+4}, v{RL+5}"); A(f"v_max3_f32 v{RL+8}, v{RL+8}, v{RL+6}, v{RL+7}")
    A(f"v_add_f32 v{RL+9}, v{RL+4}, v{RL+5}"); A(f"v_add_f32 v{RL+10}, v{RL+6}, v{RL+7}"); A(f"v_add_f32 v{RL+9}, v{RL+9}, v{RL+10}")
    A(f"v_cmp_nge_f32 vcc, 1.0, v{RL+8}"); A(f"v_cmp_u_f32 {sr(S_TMP,2)}, v{RL+9}, v{RL+9}")
    A(f"s_or_b64 vcc, vcc, {sr(S_TMP,2)}"); A(f"s_or_b32 s{S_TMP}, vcc_lo, vcc_hi")
    A(f"v_mov_b32 v{RL+8}, s{S_TMP}"); A(f"s_lshl_b32 s{S_TMP+1}, s{S_W}, 2"); A(f"s_add_u32 s{S_TMP+1}, s{S_TMP+1}, {VOTE}"); A(f"v_mov_b32 v{RL+9}, s{S_TMP+1}")
    A(f"ds_write_b32 v{RL+9}, v{RL+8}", tag="vote")
    A("v_and_b32 v1, 15, v0"); A("v_lshrrev_b32 v2, 4, v0"); A("v_mul_u32_u24 v3, 384, v1"); A("v_mul_u32_u24 v2, 24, v2"); A("v_add_u32 v3, v3, v2")
    A(f"s_mul_i32 s{S_TMP+2}, s{S_W}, 24576")
    T = V_K; k = 0
    for qb in range(4):
        if qb: A(f"s_add_u32 s{S_TMP+2}, s{S_TMP+2}, 6144")
        for e in range(4):
            t = T + (k % 3) * 16; k += 1
            for r in range(4):
                for j in range(3): A(f"v_accvgpr_read_b32 v{t+3*r+j}, a{Oreg(4*j+e, qb)+r}")
            for p in range(6): A(f"v_pk_mul_f32 {vr(t+2*p,2)}, {vr(t+2*p,2)}, {vr(RL+(qb&~1),2)} op_sel:[0,{qb&1}] op_sel_hi:[1,{qb&1}]")
            for p in range(6): A(f"v_cvt_pk_bf16_f32 v{t+p}, v{t+2*p}, v{t+2*p+1}")
            A(f"buffer_store_dwordx4 {vr(t)}, v3, {sr(S_OUT)}, s{S_TMP+2} offen offset:{96*e}{stflags}")
            A(f"buffer_store_dwordx2 {vr(t+4,2)}, v3, {sr(S_OUT)}, s{S_TMP+2} offen offset:{96*e+16}{stflags}")
def fallback_max(A):
    MX = V_V
    for qb in range(4): A(f"v_mov_b32 v{MX+qb}, 0xff800000")
    A(f"s_mov_b32 s{S_DMA}, 0")
    A("L_fb_loop:")
    for f in range(12):
        A(f"s_add_u32 s{S_TMP}, s{S_DMA}, {(f//4)*4096}")
        A(f"buffer_load_dwordx4 {vr(V_K+4*f)}, v{V_KA}, {sr(S_WS)}, s{S_TMP} offen offset:{(f%4)*1024} sc1")
    A("s_waitcnt vmcnt(0)")
    for qb in range(4):
        for tb in range(2):
            for s in range(6):
                S = vr(Sreg(qb, tb)); A(f"v_mfma_f32_16x16x32_bf16 {S}, {Kreg(tb,s)}, {Qreg(qb,s)}, {'0' if s == 0 else S}")
    for qb in range(4):
        for i in range(4): A(f"v_max3_f32 v{MX+qb}, v{MX+qb}, v{V_S+8*qb+2*i}, v{V_S+8*qb+2*i+1}")
    A(f"s_add_u32 s{S_DMA}, s{S_DMA}, {TILE}"); A(f"s_cmp_lt_u32 s{S_DMA}, {HEADWS}"); A("s_cbranch_scc1 L_fb_loop")
    rowmax_to_negm(A, lambda qb: [MX + qb], 0.0)

def gen_attn_phase1():
    P = []; A = lambda t, **k: P.append(I(t, **k))
    A("s_cmp_ge_u32 s2, 256"); A("s_cbranch_scc1 L_end")
    A(f"s_and_b32 s{S_H}, s2, 7"); A(f"s_lshr_b32 s{S_TMP}, s2, 6"); A(f"s_lshl_b32 s{S_TMP}, s{S_TMP}, 3"); A(f"s_add_u32 s{S_H}, s{S_H}, s{S_TMP}")
    A(f"s_bfe_u32 s{S_J}, s2, 0x30003")
    load_ptrs_and_srds(A, prod=False, attn=True)
    stamp(A, 0)
    attn_setup(A)
    A(f"s_mov_b32 s{S_PASS}, 0")
    R = []; A = lambda t, **k: R.append(I(t, **k))
    A("L_restart:")
    A(f"s_mov_b32 s{S_DMA}, 0")
    for t in range(3):
        R.extend(dma_group(t)); A(f"s_add_u32 s{S_DMA}, s{S_DMA}, {TILE}")
    A(f"s_sub_u32 s{S_DMA}, s{S_DMA}, {TILE}")
    stamp(A, 5)
    zero_acc(A)
    stamp(A, 6)
    A("s_barrier", waits=["dma0"])
    stamp(A, 7)
    for f in range(12): R.append(k_read(0, f))
    A(f"s_cmp_lg_u32 s{S_PASS}, 0"); A("s_cbranch_scc1 L_skipmax")
    F = []; A = lambda t, **k: F.append(I(t, **k))
    first_max(A)
    F2 = []; A = lambda t, **k: F2.append(I(t, **k))
    A("L_skipmax:"); A("s_waitcnt lgkmcnt(0)"); stamp(A, 1); A(f"s_mov_b32 s{S_CNT}, 16"); A("s_nop 7")
    B = [I(".p2align 6"), I("L_loop:")]
    for slot in range(4): B += iteration(slot, [I(f"s_add_u32 s{S_DMA}, s{S_DMA}, {TILE}")])
    B += [I(f"s_sub_u32 s{S_CNT}, s{S_CNT}, 1"), I(f"s_cmp_lg_u32 s{S_CNT}, 0"), I("s_cbranch_scc1 L_loop")]
    E = []; A = lambda t, **k: E.append(I(t, **k))
    stamp(A, 2)
    epilogue(A)
    stamp(A, 3)
    if PROF: A("s_waitcnt vmcnt(0)"); stamp(A, 4); stamps_out(A)
    A(f"v_mov_b32 v1, {VOTE}")
    A("s_barrier", waits=["vote"])
    A(f"ds_read_b128 {vr(V_S)}, v1")
    A(f"v_or3_b32 v1, v{V_S}, v{V_S+1}, v{V_S+2}"); A(f"v_or_b32 v1, v1, v{V_S+3}"); A(f"v_readfirstlane_b32 s{S_TMP}, v1")
    A(f"s_cmp_lg_u32 s{S_PASS}, 0"); A("s_cbranch_scc1 L_end")
    A(f"s_cmp_eq_u32 s{S_TMP}, 0"); A("s_cbranch_scc1 L_end")
    A("s_waitcnt vmcnt(0) lgkmcnt(0)")
    G = []; A = lambda t, **k: G.append(I(t, **k))
    fallback_max(A)
    A(f"s_mov_b32 s{S_PASS}, 1"); A("s_barrier"); A("s_branch L_restart")
    Z = [I("L_end:"), I("s_endpgm")]
    n = finalize([("P", P), ("R", R), ("F", F), ("F2", F2), ("B", B), ("B", B), ("E", E), ("G", G), ("G", G), ("R", R), ("F2", F2), ("B", B)])
    print("nops inserted", n, "loop instrs", len(B), file=sys.stderr)
    return "".join(text(x) for x in (P, R, F, F2, B, E, G, Z))

def file_phase1():
    s = HDR
    s += f"; @launch kernel=prepass_kernel grid=(2048,1,1) block=(256,1,1) lds=0\n"
    s += f"; @launch kernel={NAME}_kernel grid=(256,1,1) block=(256,1,1) lds={VOTE+64}\n"
    s += '.amdgcn_target "amdgcn-amd-amdhsa--gfx950"\n.text\n'
    s += khead("prepass_kernel") + gen_prepass()
    s += khead(NAME + "_kernel") + gen_attn_phase1()
    s += '.section .rodata,"a"\n.p2align 6\n' + kd("prepass_kernel", 128, 128) + ".p2align 6\n" + kd(NAME + "_kernel")
    return s
if __name__ == "__main__":
    PROF = "prof" in sys.argv
    open(sys.argv[1], "w").write(file_phase1())
```

```python
import sys
sys.path.insert(0, "dev")
import gen
from gen import *
gen.V_P = None
def Preg(qb): return V_S + 8 * qb
V_AT = 1; V_POLL = 2
V_Z = 10
V_PA = 184; V_T = 188; V_VB = 192; V_KA_ = 224; V_KB_ = 240
S_C3 = 3; S_W3072 = 37; S_J = gen.S_J; S_CNT = 41
S_N768 = 45; S_N384 = 46; S_N64 = 47; S_N768B = 49
S_PASS = 57; gen.S_PROF = 58
S_HOFF = 76; S_C768 = 77; S_C384 = 78; S_PTW = S_C768; S_T = 79
S_MK = 88; S_BIT = 90; S_SITE = 100; S_SPIN = 101
ST = " sc1"
class Off:
    def __init__(s, o768, o768b, o384, o64): s.o768, s.o768b, s.o384, s.o64 = o768, o768b, o384, o64
NEXT = Off(S_N768, S_N768B, S_N384, S_N64); CUR = Off(S_C768, None, S_C384, None)
KLD, KSC, VLD, VSC = V_PA, V_PA + 1, V_PA + 2, V_PA + 3
def addr_setup(A):
    A(f"s_mul_i32 s{S_W3072}, s{S_W}, 3072")
    A(f"v_lshlrev_b32 v{V_KA}, 4, v0"); A(f"v_add_u32 v{V_KB}, {2*TILE}, v{V_KA}")
    A("v_and_b32 v1, 15, v0"); A("v_lshrrev_b32 v2, 4, v0")
    A(f"v_mul_u32_u24 v{KLD}, 768, v1"); A(f"v_lshl_add_u32 v{KLD}, v2, 5, v{KLD}")
    A(f"v_lshlrev_b32 v{KSC}, 4, v2")
    A(f"v_add_u32 v{V_D0}, s{S_W3072}, v{V_KA}"); A(f"v_add_u32 v{V_D1}, 12288, v{V_D0}")
    A(f"v_mul_u32_u24 v{VLD}, 12, v0"); A(f"v_add_u32 v{VLD}, s{S_W3072}, v{VLD}")
    A(f"s_lshr_b32 s{S_TMP}, s{S_W}, 1"); A(f"s_mul_i32 s{S_TMP}, s{S_TMP}, {16*768}")
    A(f"s_and_b32 s{S_TMP+1}, s{S_W}, 1"); A(f"s_mul_i32 s{S_TMP+2}, s{S_TMP+1}, 384"); A(f"s_add_u32 s{S_TMP}, s{S_TMP}, s{S_TMP+2}")
    A(f"v_add_u32 v{KLD}, s{S_TMP}, v{KLD}")
    A(f"s_mul_i32 s{S_TMP+2}, s{S_TMP+1}, 192"); A(f"v_add_u32 v{KSC}, s{S_TMP+2}, v{KSC}")
    A(f"v_and_b32 v3, 3, v0"); A(f"v_bfe_u32 v{VSC}, v0, 2, 1"); A(f"v_lshlrev_b32 v{VSC}, 5, v{VSC}"); A(f"v_lshl_add_u32 v{VSC}, v3, 1, v{VSC}")
    A(f"s_lshl_b32 s{S_TMP}, s{S_W}, 3"); A(f"v_add_u32 v{VSC}, s{S_TMP}, v{VSC}")
    A(f"v_mul_u32_u24 v{gen.V_VA}, 3072, v2"); A(f"v_lshl_add_u32 v{gen.V_VA}, v1, 4, v{gen.V_VA}"); A(f"v_add_u32 v{gen.V_VA}, 12288, v{gen.V_VA}")
    A(f"v_add_u32 v{gen.V_VB}, {2*TILE}, v{gen.V_VA}")
def set_off(A, off, st, ptw=None):
    A(f"s_mul_i32 s{off.o768}, s{st}, {32*768}")
    if off.o768b is not None: A(f"s_add_u32 s{off.o768b}, s{off.o768}, {16*768}")
    A(f"s_mul_i32 s{off.o384}, s{st}, 384")
    if off.o64 is not None: A(f"s_lshl_b32 s{off.o64}, s{st}, 6")
def k_loads(i, R, off):
    return [I(f"buffer_load_dwordx4 {vr(R)}, v{KLD}, {sr(S_QK)}, s{off.o768} offen offset:{128*i}"),
            I(f"buffer_load_dwordx4 {vr(R+4)}, v{KLD}, {sr(S_QK)}, s{off.o768} offen offset:{128*i+16}"),
            I(f"buffer_load_dwordx4 {vr(R+8)}, v{KSC}, {sr(S_KZ)}, s{off.o384} offen offset:{64*i}"),
            I(f"buffer_load_dwordx4 {vr(R+12)}, v{KSC}, {sr(S_KS)}, s{off.o384} offen offset:{64*i}")]
def k_comp(R, T):
    c = []
    for p in range(4):
        a, b = R + 2 * p, R + 2 * p + 1; z = R + 8 + p; s = R + 12 + p
        c += [f"v_cvt_f32_i32 v{a}, v{a}", f"v_cvt_f32_i32 v{b}, v{b}",
              f"v_lshlrev_b32 v{T}, 16, v{z}", f"v_and_b32 v{T+1}, s{S_MASK}, v{z}",
              rnd(a, a), rnd(b, b),
              f"v_lshlrev_b32 v{T+2}, 16, v{s}", f"v_and_b32 v{T+3}, s{S_MASK}, v{s}",
              f"v_pk_add_f32 {vr(a,2)}, {vr(a,2)}, {vr(T,2)} neg_lo:[0,1] neg_hi:[0,1]",
              f"v_pk_mul_f32 {vr(T+2,2)}, {vr(T+2,2)}, {sr(S_C,2)}",
              rnd(a, a), rnd(b, b),
              f"v_pk_mul_f32 {vr(a,2)}, {vr(a,2)}, {vr(T+2,2)}",
              f"v_cvt_pk_bf16_f32 v{z}, v{a}, v{b}"]
    return [I(x) for x in c]
def k_store(i, R, ptw, glob=True, slot=None):
    o = []
    if glob: o.append(I(f"buffer_store_dwordx4 {vr(R+8)}, v{V_D0}, {sr(S_WS)}, s{ptw} offen offset:{1024*i}{ST}", tag="pst"))
    if slot is not None: o.append(I(f"ds_write_b128 v{V_D0}, {vr(R+8)} offset:{slot*TILE+1024*i}", tag="pds"))
    return o
def v_loads(R, Z, off):
    ld = [I(f"buffer_load_short_d16_hi v{Z}, v{VSC}, {sr(S_VZ)}, s{off.o64} offen"),
          I(f"buffer_load_short_d16_hi v{Z+1}, v{VSC}, {sr(S_VS)}, s{off.o64} offen")]
    for t in range(8):
        ld.append(I(f"buffer_load_dwordx3 {vr(R+4*t,3)}, v{VLD}, {sr(S_QV)}, s{off.o768 if t < 4 else off.o768b} offen offset:{768*(t%4)}"))
    return ld
def v_comp(R, X, Z):
    c = []
    for t in range(8): c.append(f"v_readlane_b32 s{S_VZS+t}, v{Z}, {t}")
    for t in range(8): c.append(f"v_readlane_b32 s{S_VSS+t}, v{Z+1}, {t}")
    out = [R, R + 4, X]
    for u in range(4):
        g = R + 8 * u
        c += [f"v_cvt_f32_i32 v{g+7}, v{g+6}", f"v_cvt_f32_i32 v{g+6}, v{g+2}", f"v_cvt_f32_i32 v{g+2}, v{g+1}",
              f"v_cvt_f32_i32 v{g+3}, v{g+5}", f"v_cvt_f32_i32 v{g+1}, v{g+4}", f"v_cvt_f32_i32 v{g}, v{g}"]
        pr = [g, g + 2, g + 6]
        for p in (pr[2], pr[1], pr[0]): c += [rnd(p, p), rnd(p + 1, p + 1)]
        for p in (pr[2], pr[1], pr[0]): c.append(f"v_pk_add_f32 {vr(p,2)}, {vr(p,2)}, {sr(S_VZS+2*u,2)} neg_lo:[0,1] neg_hi:[0,1]")
        for p in (pr[2], pr[1], pr[0]): c += [rnd(p, p), rnd(p + 1, p + 1)]
        for p in (pr[2], pr[1], pr[0]): c.append(f"v_pk_mul_f32 {vr(p,2)}, {vr(p,2)}, {sr(S_VSS+2*u,2)}")
        for j in (2, 1, 0): c.append(f"v_cvt_pk_bf16_f32 v{out[j]+u}, v{pr[j]}, v{pr[j]+1}")
    return [I(x) for x in c]
def v_store(R, X, ptw, glob=True, slot=None):
    out = [R, R + 4, X]; o = []
    for j in range(3):
        if glob: o.append(I(f"buffer_store_dwordx4 {vr(out[j])}, v{V_D1}, {sr(S_WS)}, s{ptw} offen offset:{1024*j}{ST}", tag="pst"))
        if slot is not None: o.append(I(f"ds_write_b128 v{V_D1}, {vr(out[j])} offset:{slot*TILE+1024*j}", tag="pds"))
    return o
DMAF = " sc1"
def dma_group(slot):
    out = [I(f"s_add_u32 m0, s{S_W3072}, {slot*TILE}")]
    for k in range(3): out.append(I(f"buffer_load_dwordx4 v{V_D0}, {sr(S_WS)}, s{S_DMA} offen offset:{1024*k}{DMAF} lds", tag=f"dma{slot}"))
    out.append(I(f"s_add_u32 m0, s{S_W3072}, {slot*TILE+12288}"))
    for k in range(3): out.append(I(f"buffer_load_dwordx4 v{V_D1}, {sr(S_WS)}, s{S_DMA} offen offset:{1024*k}{DMAF} lds", tag=f"dma{slot}"))
    return out
def poll(dst=V_POLL): return I(f"buffer_load_dwordx2 {vr(dst,2)}, off, {sr(S_DBG)}, s{S_HOFF} sc1")
def post():
    return [I(f"v_mov_b32 v{V_T}, s{S_BIT}"), I(f"v_mov_b32 v{V_T+1}, s{S_BIT+1}"),
            I(f"s_or_b64 {sr(S_MK,2)}, {sr(S_MK,2)}, {sr(S_BIT,2)}"),
            I(f"buffer_atomic_or_x2 {vr(V_T,2)}, v{V_AT}, {sr(S_DBG)}, s{S_HOFF} offen sc1"),
            I(f"s_lshl_b64 {sr(S_BIT,2)}, {sr(S_BIT,2)}, 8")]
SITES = []
def check_site(tile_sgpr_ready=True):
    n = len(SITES); SITES.append(n)
    return [I(f"s_bitcmp1_b64 {sr(S_MK,2)}, s{S_T}"), I(f"s_cbranch_scc0 L_slow{n}"), I(f"L_ret{n}:")]
def softmax_gaps(gaps, qb, g0):
    s0, s1, p = Sreg(qb, 0), Sreg(qb, 1), Preg(qb)
    for r in range(4): gaps[g0 + 1 + r].append(I(f"v_exp_f32 v{s0+r}, v{s0+r}"))
    gaps[g0 + 5] += [I(f"v_cvt_pk_bf16_f32 v{p}, v{s0}, v{s0+1}"), I(f"v_cvt_pk_bf16_f32 v{p+1}, v{s0+2}, v{s0+3}")]
    for r in range(4): gaps[g0 + 6 + r].append(I(f"v_exp_f32 v{s1+r}, v{s1+r}"))
    gaps[g0 + 10] += [I(f"v_cvt_pk_bf16_f32 v{p+2}, v{s1}, v{s1+1}"), I(f"v_cvt_pk_bf16_f32 v{p+3}, v{s1+2}, v{s1+3}")]
BG = 59
def iter_parts(slot, do_post=False, do_poll=False, do_cons=False):
    M = []
    for qb in range(4):
        for tb in range(2):
            for s in range(6):
                S = vr(Sreg(qb, tb))
                M.append(mf(S, Kreg(tb, s), Qreg(qb, s), vr(V_NM + 4 * qb) if s == 0 else S))
    def pv(db, qb): o = ar(Oreg(db, qb)); return mf(o, vr(V_V + 4 * (db % 6)), vr(Preg(qb)), o)
    def on(qb): o = ar(Lreg(qb)); return mf(o, vr(V_ONES), vr(Preg(qb)), o)
    for db in range(4):
        for qb in range(3): M.append(pv(db, qb))
    for qb in range(3): M.append(on(qb))
    for db in range(4): M.append(pv(db, 3))
    M.append(on(3))
    for db in range(4, 12):
        for qb in range(4): M.append(pv(db, qb))
    gaps = [[] for _ in range(100)]
    for qb in range(4): softmax_gaps(gaps, qb, 12 * qb + 11)
    for db in range(6): gaps[1 + 2 * db].append(v_read(slot, db))
    nslot = (slot + 1) % 4
    gaps[46] += [I(f"s_add_u32 s{S_C3}, s{S_C3}, 1"), I(f"s_xor_b32 s{S_T}, s{S_C3}, s{S_J}")]
    if do_cons:
        gaps[58] += [I(f"v_readfirstlane_b32 s{S_TMP}, v{V_POLL}"), I(f"v_readfirstlane_b32 s{S_TMP+1}, v{V_POLL+1}")]
        gaps[BG] += [I(f"s_or_b64 {sr(S_MK,2)}, {sr(S_MK,2)}, {sr(S_TMP,2)}")]
    gaps[BG] += [I(f"s_mul_i32 s{S_DMA}, s{S_T}, {TILE}"), I("s_barrier", waits=[f"dma{nslot}"] + (["pst"] if do_post else []))]
    gaps[BG + 1] += ([*post()] if do_post else []) + ([poll()] if do_poll else []) + check_site()
    dg = dma_group((slot + 3) % 4)
    for ins, p in zip(dg, [61, 61, 62, 63, 67, 68, 69, 70]): gaps[p].append(ins)
    for db, p in {6: 64, 7: 65, 8: 66, 9: 67, 10: 72, 11: 76}.items(): gaps[p].append(v_read(slot, db))
    for f, p in enumerate([71, 73, 74, 75, 77, 79, 81, 83, 85, 87, 89, 91]): gaps[p].append(k_read(nslot, f))
    return M, gaps
def cost(ins): return 0 if ins.kind == "label" else (2 if ins.kind == "trans" else 1)
def place(stream, gl, start, end, cap=2):
    slots = []
    for x in range(start, end):
        g = gl[x // 100][x % 100]
        if x % 100 in (BG, BG + 1): continue
        slots += [x] * max(0, cap - sum(cost(i) for i in g))
    if len(slots) < len(stream): return place(stream, gl, start, end, cap + 1)
    for k, ins in enumerate(stream):
        x = slots[(k * len(slots)) // len(stream)]
        gl[x // 100][x % 100].append(ins)
def prod_stream():
    A_, B_ = V_KA_, V_KB_
    s = []
    s += k_comp(B_, V_T) + k_store(1, B_, S_PTW) + k_loads(1, B_, NEXT)
    s += k_comp(A_, V_T) + k_store(0, A_, S_PTW) + k_loads(2, A_, CUR)
    s += v_comp(V_VB, V_T, V_Z) + v_store(V_VB, V_T, S_PTW) + v_loads(V_VB, V_Z, NEXT)
    s += k_comp(A_, V_T) + k_store(2, A_, S_PTW) + k_loads(0, A_, NEXT)
    s += [I(f"s_mov_b32 s{S_C768}, s{S_N768}"), I(f"s_mov_b32 s{S_C384}, s{S_N384}"),
          I(f"s_add_u32 s{S_N768}, s{S_N768}, {8*TILE}"), I(f"s_add_u32 s{S_N768B}, s{S_N768B}, {8*TILE}"),
          I(f"s_add_u32 s{S_N384}, s{S_N384}, {8*384}"), I(f"s_add_u32 s{S_N64}, s{S_N64}, 512")]
    return s
def block(label, n, prod, cnt_reg):
    pp, pc = (4, 6) if n == 8 else (1, 2)
    parts = [iter_parts(i % 4, do_post=(prod and i == n - 1), do_poll=(i == pp), do_cons=(i == pc)) for i in range(n)]
    gl = [p[1] for p in parts]
    if prod: place(prod_stream(), gl, 0, (n - 1) * 100 - 5)
    L = [I(".p2align 6"), I(f"{label}:")]
    for M, gaps in parts:
        for m, g in zip(M, gaps): L.append(m); L.extend(g)
    L += [I(f"s_sub_u32 s{cnt_reg}, s{cnt_reg}, 1"), I(f"s_cmp_lg_u32 s{cnt_reg}, 0"), I(f"s_cbranch_scc1 {label}")]
    return L
SPIN_LIMIT = 40
def wait_routine():
    L = []; A = lambda t, **k: L.append(I(t, **k))
    X = V_K
    for n in SITES: A(f"L_slow{n}:"); A(f"s_mov_b32 s{S_SITE}, {n}"); A("s_branch L_wait")
    A("L_wait:"); A("s_waitcnt vmcnt(0) lgkmcnt(0)"); A(f"s_mov_b32 s{S_SPIN}, {SPIN_LIMIT}")
    A("L_spin:")
    if gen.PROF: A(f"s_add_u32 s{gen.S_TS+7}, s{gen.S_TS+7}, 100")
    L.append(poll(X)); A("s_waitcnt vmcnt(0)")
    A(f"v_readfirstlane_b32 s{S_TMP}, v{X}"); A(f"v_readfirstlane_b32 s{S_TMP+1}, v{X+1}"); A("s_nop 1")
    A(f"s_or_b64 {sr(S_MK,2)}, {sr(S_MK,2)}, {sr(S_TMP,2)}"); A(f"s_bitcmp1_b64 {sr(S_MK,2)}, s{S_T}"); A("s_cbranch_scc1 L_wret")
    A("s_sleep 4"); A(f"s_sub_u32 s{S_SPIN}, s{S_SPIN}, 1"); A(f"s_cmp_lg_u32 s{S_SPIN}, 0"); A("s_cbranch_scc1 L_spin")
    SV = Sreg(0, 1); T = Sreg(1, 1); Z = Sreg(2, 1)
    for i in range(16): A(f"v_writelane_b32 v{SV}, s{S_VZS+i}, {i}")
    E = Off(S_TMP + 2, S_TMP + 3, S_TMP + 4, S_TMP + 5)
    set_off(A, E, S_T)
    A(f"v_mov_b32 v{Z}, 0"); A(f"v_mov_b32 v{Z+1}, 0")
    for i in range(3): L.extend(k_loads(i, X + 16 * i, E))
    for i in range(3): L.extend(k_comp(X + 16 * i, T)); L.extend(k_store(i, X + 16 * i, E.o768))
    A("s_nop 1")
    L.extend(v_loads(X, Z, E)); L.extend(v_comp(X, T, Z)); L.extend(v_store(X, T, E.o768))
    for i in range(16): A(f"v_readlane_b32 s{S_VZS+i}, v{SV}, {i}")
    A("s_waitcnt vmcnt(0)")
    A("L_wret:"); A("s_nop 7")
    for n in SITES[:-1]: A(f"s_cmp_eq_u32 s{S_SITE}, {n}"); A(f"s_cbranch_scc1 L_ret{n}")
    A(f"s_branch L_ret{SITES[-1]}")
    return L

def interleave(main, extra, start=0, every=None):
    if not extra: return main
    n = len(main) - start
    out = main[:start]; k = 0
    for i, ins in enumerate(main[start:]):
        out.append(ins)
        while k < len(extra) and (k + 1) * n <= (i + 1) * len(extra) * 1.0 + 1e-9 if every is None else (k < len(extra) and i % every == every - 1 and not out[-1] is extra[k-1]):
            out.append(extra[k]); k += 1
            if every is not None: break
    out += extra[k:]
    return out
CFG = dict(nA=2, nB=5, nC=4)
def rowmax2(A, src, off):
    gen.V_P = V_V
    rowmax_to_negm(A, src, off)
def gen_coop():
    SITES.clear()
    P = []; A = lambda t, **k: P.append(I(t, **k))
    A("s_cmp_ge_u32 s2, 256"); A("s_cbranch_scc1 L_end")
    A(f"s_and_b32 s{S_H}, s2, 7"); A(f"s_lshr_b32 s{S_TMP}, s2, 6"); A(f"s_lshl_b32 s{S_TMP}, s{S_TMP}, 3"); A(f"s_add_u32 s{S_H}, s{S_H}, s{S_TMP}")
    A(f"s_bfe_u32 s{S_J}, s2, 0x30003")
    load_ptrs_and_srds(A, prod=True, attn=True)
    stamp(A, 0)
    if gen.PROF: A(f"s_mov_b32 s{gen.S_TS+7}, 0")
    addr_setup(A)
    O0 = Off(S_TMP + 2, S_TMP + 3, S_TMP + 4, S_TMP + 5)
    O1 = NEXT
    set_off(A, O0, S_J)
    K0, VV0, T0, Z0 = 64, 112, 144, 148
    K1, VV1, T1, Z1 = 192, 150, V_T, V_Z
    for z in (Z0, Z0 + 1, Z1, Z1 + 1): A(f"v_mov_b32 v{z}, 0")
    for i in range(3): P.extend(k_loads(i, K0 + 16 * i, O0))
    P.extend(v_loads(VV0, Z0, O0))
    A(f"s_xor_b32 s{S_TMP}, s{S_J}, 1"); set_off(A, O1, S_TMP)
    for i in range(3): P.extend(k_loads(i, K1 + 16 * i, O1))
    P.extend(v_loads(VV1, Z1, O1))
    A(f"s_mov_b32 s{S_C768}, s{O0.o768}")
    A(f"s_lshl_b32 s{S_HOFF}, s{S_H}, 3"); A(f"s_mov_b32 s{S_PASS}, 0"); A(f"s_mov_b64 {sr(S_MK,2)}, 0")
    A(f"s_lshl_b64 {sr(S_BIT,2)}, 1, s{S_J}"); A(f"s_mov_b32 s{S_C3}, 2")
    A("v_and_b32 v3, 3, v0"); A("v_cmp_eq_u32 vcc, 0, v3"); A(f"v_mov_b32 v3, 0x3f803f80")
    for r in range(4): A(f"v_cndmask_b32 v{V_ONES+r}, 0, v3, vcc")
    A("v_and_b32 v1, 15, v0"); A("v_lshrrev_b32 v2, 4, v0"); A(f"v_mul_u32_u24 v3, 384, v1"); A(f"v_lshl_add_u32 v3, v2, 4, v3")
    A(f"v_lshl_add_u32 v{V_AT}, s{S_W}, 6, v0"); A(f"v_lshlrev_b32 v{V_AT}, 12, v{V_AT}")
    A(f"s_mul_i32 s{S_TMP+6}, s{S_W}, 24576")
    zero_acc(A)
    ql = []
    for qb in range(4):
        if qb: ql.append(I(f"s_add_u32 s{S_TMP+6}, s{S_TMP+6}, 6144"))
        for s_ in range(6): ql.append(I(f"buffer_load_dwordx4 {Qreg(qb,s_)}, v3, {sr(S_Q)}, s{S_TMP+6} offen offset:{64*s_}"))
    c0 = []
    for i in range(3): c0 += k_comp(K0 + 16 * i, T0) + k_store(i, K0 + 16 * i, S_C768, True, 0)
    c0 += v_comp(VV0, T0, Z0) + v_store(VV0, T0, S_C768, True, 0)
    P.extend(interleave(c0, ql))
    A(f"s_xor_b32 s{S_TMP}, s{S_J}, 2"); set_off(A, O0, S_TMP)
    for i in range(3): P.extend(k_loads(i, K0 + 16 * i, O0))
    P.extend(v_loads(VV0, Z0, O0))
    for i in range(3): P.extend(k_comp(K1 + 16 * i, T1) + k_store(i, K1 + 16 * i, None, False, 1))
    P.extend(v_comp(VV1, T1, Z1) + v_store(VV1, T1, None, False, 1))
    A(f"s_add_u32 s{S_TMP}, s{S_J}, 8"); set_off(A, NEXT, S_TMP)
    A("s_barrier", waits=["pst"])
    P.extend(post())
    P.extend(k_loads(1, V_KB_, NEXT) + k_loads(0, V_KA_, NEXT) + v_loads(V_VB, V_Z, NEXT))
    A(f"s_mov_b32 s{S_C768}, s{S_N768}"); A(f"s_mov_b32 s{S_C384}, s{S_N384}")
    A(f"s_add_u32 s{S_N768}, s{S_N768}, {8*TILE}"); A(f"s_add_u32 s{S_N768B}, s{S_N768B}, {8*TILE}")
    A(f"s_add_u32 s{S_N384}, s{S_N384}, {8*384}"); A(f"s_add_u32 s{S_N64}, s{S_N64}, 512")
    for i in range(3): P.extend(k_comp(K0 + 16 * i, T0) + k_store(i, K0 + 16 * i, None, False, 2))
    P.extend(v_comp(VV0, T0, Z0) + v_store(VV0, T0, None, False, 2))
    A("s_barrier", waits=["pds"])
    for f in range(12): P.append(k_read(0, f))
    gen.V_P = V_V
    P.append(poll())
    first_max(A)
    A(f"v_readfirstlane_b32 s{S_TMP}, v{V_POLL}"); A(f"v_readfirstlane_b32 s{S_TMP+1}, v{V_POLL+1}"); A(f"s_or_b64 {sr(S_MK,2)}, {sr(S_MK,2)}, {sr(S_TMP,2)}")
    A(f"s_mov_b32 s{S_CNT}, {CFG['nA']}")
    stamp(A, 1)
    BA = block("L_loopA", 4, True, S_CNT)
    X1 = [I(f"s_mov_b32 s{S_CNT}, {CFG['nB']}")]; stamp(lambda t: X1.append(I(t)), 5)
    BB = block("L_loopB", 8, True, S_CNT)
    X2 = [I(f"s_mov_b32 s{S_CNT}, {CFG['nC']}")]; stamp(lambda t: X2.append(I(t)), 6)
    BC = block("L_loopC", 4, False, S_CNT)
    E = []; A = lambda t, **k: E.append(I(t, **k))
    stamp(A, 2)
    epilogue(A, CFG.get("ostf", ""))
    stamp(A, 3)
    if gen.PROF: A("s_waitcnt vmcnt(0)"); stamp(A, 4); stamps_out(A)
    A(f"v_mov_b32 v{V_S+4}, {VOTE}")
    A("s_barrier", waits=["vote"])
    A(f"ds_read_b128 {vr(V_S)}, v{V_S+4}")
    A(f"v_or3_b32 v{V_S+4}, v{V_S}, v{V_S+1}, v{V_S+2}"); A(f"v_or_b32 v{V_S+4}, v{V_S+4}, v{V_S+3}"); A(f"v_readfirstlane_b32 s{S_TMP}, v{V_S+4}")
    A(f"s_cmp_lg_u32 s{S_PASS}, 0"); A("s_cbranch_scc1 L_end")
    A(f"s_cmp_eq_u32 s{S_TMP}, 0"); A("s_cbranch_scc1 L_end")
    A("s_waitcnt vmcnt(0) lgkmcnt(0)")
    G = []; A = lambda t, **k: G.append(I(t, **k))
    for x in (1, 2):
        A(f"s_xor_b32 s{S_T}, s{S_J}, {x}"); G.extend(check_site())
    A("s_barrier")
    gen.V_P = V_V + 4
    fallback_max(A)
    A(f"s_mov_b32 s{S_PASS}, 1"); A(f"s_mov_b32 s{S_C3}, 2")
    for t in range(3):
        A(f"s_xor_b32 s{S_T}, s{S_J}, {t}"); A(f"s_mul_i32 s{S_DMA}, s{S_T}, {TILE}"); G.extend(dma_group(t))
    zero_acc(A)
    A(f"v_mov_b32 v{V_POLL}, 0"); A(f"v_mov_b32 v{V_POLL+1}, 0")
    A("s_waitcnt vmcnt(0)"); A("s_barrier")
    for f in range(12): G.append(k_read(0, f))
    A("s_waitcnt lgkmcnt(0)"); A(f"s_mov_b32 s{S_CNT}, 16"); A("s_nop 7"); A("s_branch L_loopC")
    W = wait_routine()
    Z = [I("L_end:"), I("s_endpgm")]
    n = finalize([("P", P), ("A", BA), ("A", BA), ("x", X1), ("B", BB), ("B", BB), ("x", X2), ("C", BC), ("C", BC), ("E", E), ("G", G), ("C", BC), ("C", BC)],
                 [("P", P), ("A", BA), ("x", X1), ("B", BB), ("x", X2), ("C", BC), ("E", E)],
                 [("W", W)])
    print("nops", n, "sizes", len(P), len(BA), len(BB), len(BC), len(E), len(G), len(W), file=sys.stderr)
    return "".join(text(x) for x in (P, BA, X1, BB, X2, BC, E, G, W, Z))
def file_coop():
    s = HDR + f"; @launch grid=(256,1,1) block=(256,1,1) lds={VOTE+64}\n"
    s += '.amdgcn_target "amdgcn-amd-amdhsa--gfx950"\n.text\n'
    s += khead(NAME + "_kernel") + gen_coop()
    s += '.section .rodata,"a"\n.p2align 6\n' + kd(NAME + "_kernel")
    return s
if __name__ == "__main__":
    gen.PROF = "prof" in sys.argv
    for a in sys.argv[2:]:
        if "=" in a:
            k, v = a.split("=")
            if k in globals(): globals()[k] = eval(v)
            else: CFG[k] = eval(v)
    open(sys.argv[1], "w").write(file_coop())
```

```python
import sys, math, struct
sys.path.insert(0, "dev")
from emit import *
NAME = "standalone__kv_cache_quant_int4_int2_kv_with_per_channel_or_per_token_scales__prompt"
def f2u(x): return struct.unpack("<I", struct.pack("<f", x))[0]
CFOLD = f2u(192 ** -0.5 * math.log2(math.e))
BOFF = 40.0
TILE = 24576; HEADWS = 64 * TILE
HDR = open("cdna_kernels/" + NAME + ".s.ref").read().split("; Override launch geometry")[0]

S_WS = 4
S_Q = 8
S_QK = 12; S_QV = 16; S_KS = 20; S_KZ = 24; S_VS = 28; S_VZ = 32
S_W = 36
S_W6144 = 37
S_H = 38; S_J = 39
S_DMA = 40
S_CNT = 41
S_C = 42
S_MASK = 44
S_PT768 = 45
S_PT384 = 46
S_PT64 = 47
S_PTW = 48
S_TMP = 50
S_VZS = 60
S_VSS = 68
S_PASS = 76
S_OUT = 80
S_DBG = 84
S_KARG = 88
V_KA, V_KB, V_VA, V_VB, V_D0, V_D1 = 4, 5, 6, 7, 8, 9
V_ONES = 12; V_Q = 16; V_K = 64; V_V = 112; V_S = 136; V_NM = 168; V_P = 184; V_PR = 200
def vr(b, n=4): return f"v[{b}:{b+n-1}]"
def ar(b, n=4): return f"a[{b}:{b+n-1}]"
def sr(b, n=4): return f"s[{b}:{b+n-1}]"
def Qreg(qb, s): return vr(V_Q + (qb * 6 + s) * 4) if qb < 2 else ar(208 + ((qb - 2) * 6 + s) * 4)
def Kreg(tb, s): return vr(V_K + (tb * 6 + s) * 4)
def Sreg(qb, tb): return V_S + qb * 8 + tb * 4
def Oreg(db, qb): return (db * 4 + qb) * 4
def Lreg(qb): return 192 + qb * 4

def srd(A, d, ptr, off_lo=None, nrec=0):
    if off_lo is None:
        A(f"s_mov_b32 s{d}, s{ptr}"); A(f"s_mov_b32 s{d+1}, s{ptr+1}")
    else:
        A(f"s_add_u32 s{d}, s{ptr}, s{off_lo}"); A(f"s_addc_u32 s{d+1}, s{ptr+1}, 0")
    A(f"s_mov_b32 s{d+2}, {nrec}"); A(f"s_mov_b32 s{d+3}, 0x00020000")

class PA:
    kld = 0; ksc = 0; kst = 0; vld = 0; vsc = 0; vst = 0
def prod_addr_setup(A, base):
    PA.kld, PA.ksc, PA.kst, PA.vld, PA.vsc, PA.vst = range(base, base + 6)
    A("v_and_b32 v1, 15, v0"); A("v_lshrrev_b32 v2, 4, v0")
    A(f"v_mul_u32_u24 v{PA.kld}, 768, v1"); A(f"v_lshl_add_u32 v{PA.kld}, v2, 5, v{PA.kld}")
    A(f"v_lshlrev_b32 v{PA.ksc}, 4, v2")
    A(f"s_mul_i32 s{S_TMP}, s{S_W}, 3072")
    A(f"v_lshlrev_b32 v{PA.kst}, 4, v0"); A(f"v_add_u32 v{PA.kst}, s{S_TMP}, v{PA.kst}")
    A(f"v_add_u32 v{PA.vst}, 12288, v{PA.kst}")
    A(f"v_mul_u32_u24 v{PA.vld}, 12, v0"); A(f"v_add_u32 v{PA.vld}, s{S_TMP}, v{PA.vld}")
    A("v_and_b32 v1, 3, v0"); A("v_bfe_u32 v2, v0, 2, 1"); A("v_lshlrev_b32 v2, 5, v2"); A("v_lshl_add_u32 v1, v1, 1, v2")
    A(f"s_lshl_b32 s{S_TMP}, s{S_W}, 3"); A(f"v_add_u32 v{PA.vsc}, s{S_TMP}, v1")
    A(f"s_lshr_b32 s{S_TMP}, s{S_W}, 1"); A(f"s_mul_i32 s{S_TMP}, s{S_TMP}, {16*768}")
    A(f"s_and_b32 s{S_TMP+1}, s{S_W}, 1"); A(f"s_mul_i32 s{S_TMP+2}, s{S_TMP+1}, 384"); A(f"s_add_u32 s{S_TMP}, s{S_TMP}, s{S_TMP+2}")
    A(f"v_add_u32 v{PA.kld}, s{S_TMP}, v{PA.kld}")
    A(f"s_mul_i32 s{S_TMP+2}, s{S_TMP+1}, 192"); A(f"v_add_u32 v{PA.ksc}, s{S_TMP+2}, v{PA.ksc}")
def rnd(d, s): return f"v_cvt_pk_bf16_f32 v{d}, 0, v{s}"
def k_unit(i, R, T, stflags=""):
    ld = [I(f"buffer_load_dwordx4 {vr(R)}, v{PA.kld}, {sr(S_QK)}, s{S_PT768} offen offset:{128*i}"),
          I(f"buffer_load_dwordx4 {vr(R+4)}, v{PA.kld}, {sr(S_QK)}, s{S_PT768} offen offset:{128*i+16}"),
          I(f"buffer_load_dwordx4 {vr(R+8)}, v{PA.ksc}, {sr(S_KZ)}, s{S_PT384} offen offset:{64*i}"),
          I(f"buffer_load_dwordx4 {vr(R+12)}, v{PA.ksc}, {sr(S_KS)}, s{S_PT384} offen offset:{64*i}")]
    c = []
    for p in range(4):
        a, b = R + 2 * p, R + 2 * p + 1; z = R + 8 + p; s = R + 12 + p
        c += [f"v_cvt_f32_i32 v{a}, v{a}", f"v_cvt_f32_i32 v{b}, v{b}",
              f"v_lshlrev_b32 v{T}, 16, v{z}", f"v_and_b32 v{T+1}, s{S_MASK}, v{z}",
              rnd(a, a), rnd(b, b),
              f"v_lshlrev_b32 v{T+2}, 16, v{s}", f"v_and_b32 v{T+3}, s{S_MASK}, v{s}",
              f"v_pk_add_f32 {vr(a,2)}, {vr(a,2)}, {vr(T,2)} neg_lo:[0,1] neg_hi:[0,1]",
              f"v_pk_mul_f32 {vr(T+2,2)}, {vr(T+2,2)}, {sr(S_C,2)}",
              rnd(a, a), rnd(b, b),
              f"v_pk_mul_f32 {vr(a,2)}, {vr(a,2)}, {vr(T+2,2)}",
              f"v_cvt_pk_bf16_f32 v{z}, v{a}, v{b}"]
    st = [I(f"buffer_store_dwordx4 {vr(R+8)}, v{PA.kst}, {sr(S_WS)}, s{S_PTW} offen offset:{1024*i}{stflags}", tag="pst")]
    return ld, [I(x) for x in c], st
def v_unit(R, X, Z, stflags=""):
    ld = [I(f"buffer_load_short_d16_hi v{Z}, v{PA.vsc}, {sr(S_VZ)}, s{S_PT64} offen"),
          I(f"buffer_load_short_d16_hi v{Z+1}, v{PA.vsc}, {sr(S_VS)}, s{S_PT64} offen")]
    for t in range(8):
        if t < 4: ld.append(I(f"buffer_load_dwordx3 {vr(R+4*t,3)}, v{PA.vld}, {sr(S_QV)}, s{S_PT768} offen offset:{768*t}"))
        else: ld.append(I(f"buffer_load_dwordx3 {vr(R+4*t,3)}, v{PA.vld}, {sr(S_QV)}, s{S_PT768+4} offen offset:{768*(t-4)}"))
    c = []
    for t in range(8): c.append(f"v_readlane_b32 s{S_VZS+t}, v{Z}, {t}")
    for t in range(8): c.append(f"v_readlane_b32 s{S_VSS+t}, v{Z+1}, {t}")
    out = [R, R + 4, X]
    for u in range(4):
        g = R + 8 * u
        c += [f"v_cvt_f32_i32 v{g+7}, v{g+6}", f"v_cvt_f32_i32 v{g+6}, v{g+2}", f"v_cvt_f32_i32 v{g+2}, v{g+1}",
              f"v_cvt_f32_i32 v{g+3}, v{g+5}", f"v_cvt_f32_i32 v{g+1}, v{g+4}", f"v_cvt_f32_i32 v{g}, v{g}"]
        pr = [g, g + 2, g + 6]
        for p in (pr[2], pr[1], pr[0]): c += [rnd(p, p), rnd(p + 1, p + 1)]
        for p in (pr[2], pr[1], pr[0]): c.append(f"v_pk_add_f32 {vr(p,2)}, {vr(p,2)}, {sr(S_VZS+2*u,2)} neg_lo:[0,1] neg_hi:[0,1]")
        for p in (pr[2], pr[1], pr[0]): c += [rnd(p, p), rnd(p + 1, p + 1)]
        for p in (pr[2], pr[1], pr[0]): c.append(f"v_pk_mul_f32 {vr(p,2)}, {vr(p,2)}, {sr(S_VSS+2*u,2)}")
        for j in (2, 1, 0): c.append(f"v_cvt_pk_bf16_f32 v{out[j]+u}, v{pr[j]}, v{pr[j]+1}")
    st = [I(f"buffer_store_dwordx4 {vr(out[j])}, v{PA.vst}, {sr(S_WS)}, s{S_PTW} offen offset:{1024*j}{stflags}", tag="pst") for j in range(3)]
    return ld, [I(x) for x in c], st
S_PT768B = S_PT768 + 4
def set_ptile(A, st):
    A(f"s_mul_i32 s{S_PT768}, s{st}, {32*768}"); A(f"s_add_u32 s{S_PT768B}, s{S_PT768}, {16*768}")
    A(f"s_mul_i32 s{S_PT384}, s{st}, 384"); A(f"s_lshl_b32 s{S_PT64}, s{st}, 6"); A(f"s_mul_i32 s{S_PTW}, s{st}, {TILE}")
def load_ptrs_and_srds(A, prod=True, attn=True):
    K = S_KARG
    A(f"s_load_dwordx4 {sr(K)}, s[0:1], 0"); A(f"s_load_dwordx4 {sr(K+4)}, s[0:1], 16"); A(f"s_load_dwordx4 {sr(K+8)}, s[0:1], 32")
    A(f"s_load_dwordx4 {sr(S_TMP+2)}, s[0:1], 48"); A(f"s_load_dwordx4 {sr(S_TMP+6)}, s[0:1], 64")
    A("v_lshrrev_b32 v1, 6, v0"); A("v_and_b32 v0, 63, v0"); A(f"v_readfirstlane_b32 s{S_W}, v1")
    A(f"s_mul_i32 s{S_TMP}, s{S_H}, {HEADWS}")
    A("s_waitcnt lgkmcnt(0)")
    srd(A, S_WS, S_TMP + 8, S_TMP, HEADWS)
    if prod:
        srd(A, S_QK, K + 2, S_TMP, HEADWS); srd(A, S_QV, K + 4, S_TMP, HEADWS)
        A(f"s_mul_i32 s{S_TMP}, s{S_H}, 24576"); srd(A, S_KS, K + 6, S_TMP, 24576); srd(A, S_KZ, K + 8, S_TMP, 24576)
        A(f"s_lshl_b32 s{S_TMP}, s{S_H}, 12"); srd(A, S_VS, K + 10, S_TMP, 4096); srd(A, S_VZ, S_TMP + 2, S_TMP, 4096)
        A(f"s_mov_b32 s{S_C}, {CFOLD:#x}"); A(f"s_mov_b32 s{S_C+1}, {CFOLD:#x}"); A(f"s_mov_b32 s{S_MASK}, 0xffff0000")
    if attn:
        A(f"s_mul_i32 s{S_TMP}, s{S_H}, 786432"); A(f"s_mul_i32 s{S_TMP+1}, s{S_J}, 98304"); A(f"s_add_u32 s{S_TMP}, s{S_TMP}, s{S_TMP+1}")
        srd(A, S_Q, K, S_TMP, 98304); srd(A, S_OUT, S_TMP + 4, S_TMP, 98304)
        srd(A, S_DBG, S_TMP + 6, None, 256)
def kd(name, vgpr=512, acc=256):
    return f""".amdhsa_kernel {name}
  .amdhsa_next_free_vgpr {vgpr}
  .amdhsa_next_free_sgpr 102
  .amdhsa_accum_offset {acc}
  .amdhsa_group_segment_fixed_size 0
  .amdhsa_kernarg_size 80
  .amdhsa_user_sgpr_count 2
  .amdhsa_user_sgpr_kernarg_segment_ptr 1
  .amdhsa_system_sgpr_workgroup_id_x 1
  .amdhsa_float_denorm_mode_32 3
.end_amdhsa_kernel
"""
def khead(name): return f".globl {name}\n.p2align 8\n.type {name},@function\n{name}:\n"

def gen_prepass():
    L = []; A = lambda t, **k: L.append(I(t, **k))
    A("s_cmp_ge_u32 s2, 2048"); A("s_cbranch_scc1 L_pp_end")
    A(f"s_and_b32 s{S_H}, s2, 7"); A(f"s_lshr_b32 s{S_TMP}, s2, 9"); A(f"s_lshl_b32 s{S_TMP}, s{S_TMP}, 3"); A(f"s_add_u32 s{S_H}, s{S_H}, s{S_TMP}")
    A(f"s_bfe_u32 s{S_J}, s2, 0x60003")
    load_ptrs_and_srds(A, prod=True, attn=False)
    prod_addr_setup(A, 4)
    set_ptile(A, S_J)
    A("v_mov_b32 v10, 0"); A("v_mov_b32 v11, 0")
    ku = [k_unit(i, 16 + 16 * i, 12) for i in range(3)]
    vu = v_unit(64, 96, 10)
    for u in ku + [vu]: L.extend(u[0])
    for u in ku + [vu]: L.extend(u[1]); L.extend(u[2])
    A("L_pp_end:"); A("s_endpgm")
    finalize([("pp", L)])
    return text(L)

PROF = False
STM = {}
CLK = "s_memrealtime"
S_PROF = 78
S_TS = 92
def stamp(A, i):
    if not PROF: return
    if PROF == 2: i = {8: 5, 9: 6, 10: 2, 5: None, 6: None, 2: None}.get(i, i)
    if PROF == 3: i = {10: 5, 11: 6, 12: 2, 5: None, 6: None, 2: None}.get(i, i)
    if PROF == 4: i = STM.get(i) if i not in (0, 1) else i
    if i is None or isinstance(i, str) or i > 7: return
    A(f"{CLK} {sr(S_PROF,2)}"); A("s_waitcnt lgkmcnt(0)"); A(f"s_mov_b32 s{S_TS+i}, s{S_PROF}")
def stamps_out(A):
    if not PROF: return
    A(f"s_load_dwordx2 {sr(S_TMP+2,2)}, s[0:1], 72"); A("s_waitcnt lgkmcnt(0)")
    A(f"s_mov_b32 s{S_TMP}, {200*1024*1024}"); srd(A, S_Q, S_TMP + 2, S_TMP, 1 << 20)
    for i in range(8): A(f"v_mov_b32 v{16+i}, s{S_TS+i}")
    A(f"s_lshl_b32 s{S_TMP}, s2, 2"); A(f"s_add_u32 s{S_TMP}, s{S_TMP}, s{S_W}"); A(f"s_lshl_b32 s{S_TMP}, s{S_TMP}, 5"); A("v_mov_b32 v2, 0")
    A(f"buffer_store_dwordx4 v[16:19], v2, {sr(S_Q)}, s{S_TMP} offen"); A(f"buffer_store_dwordx4 v[20:23], v2, {sr(S_Q)}, s{S_TMP} offen offset:16")
def mf(d, a, b, c): return I(f"v_mfma_f32_16x16x32_bf16 {d}, {a}, {b}, {c}")
def k_read(slot, f):
    base = V_KA if slot < 2 else V_KB
    return I(f"ds_read_b128 {vr(V_K+4*f)}, v{base} offset:{(slot&1)*TILE + f*1024}")
def v_read(slot, db):
    base = V_VA if slot < 2 else V_VB
    return I(f"ds_read_b128 {vr(V_V+4*(db%6))}, v{base} offset:{(slot&1)*TILE + db*256}")
def dma_group(slot, flags=""):
    out = [I(f"s_add_u32 m0, s{S_W6144}, {slot*TILE}")]
    for k in range(4): out.append(I(f"buffer_load_dwordx4 v{V_D0}, {sr(S_WS)}, s{S_DMA} offen offset:{1024*k} lds{flags}", tag=f"dma{slot}"))
    out.append(I(f"s_add_u32 m0, s{S_W6144}, {slot*TILE+4096}"))
    for k in range(2): out.append(I(f"buffer_load_dwordx4 v{V_D1}, {sr(S_WS)}, s{S_DMA} offen offset:{1024*k} lds{flags}", tag=f"dma{slot}"))
    return out
def softmax_gaps(gaps, qb, g0):
    s0, s1, p = Sreg(qb, 0), Sreg(qb, 1), V_P + 4 * qb
    for r in range(4): gaps[g0 + 1 + r].append(I(f"v_exp_f32 v{s0+r}, v{s0+r}"))
    gaps[g0 + 5] += [I(f"v_cvt_pk_bf16_f32 v{p}, v{s0}, v{s0+1}"), I(f"v_cvt_pk_bf16_f32 v{p+1}, v{s0+2}, v{s0+3}")]
    for r in range(4): gaps[g0 + 6 + r].append(I(f"v_exp_f32 v{s1+r}, v{s1+r}"))
    gaps[g0 + 10] += [I(f"v_cvt_pk_bf16_f32 v{p+2}, v{s1}, v{s1+1}"), I(f"v_cvt_pk_bf16_f32 v{p+3}, v{s1+2}, v{s1+3}")]
BAR_GAP = 59
def iteration(slot, next_dma, extra=None, dmaflags=""):
    M = []
    for qb in range(4):
        for tb in range(2):
            for s in range(6):
                S = vr(Sreg(qb, tb))
                M.append(mf(S, Kreg(tb, s), Qreg(qb, s), vr(V_NM + 4 * qb) if s == 0 else S))
    def pv(db, qb): o = ar(Oreg(db, qb)); return mf(o, vr(V_V + 4 * (db % 6)), vr(V_P + 4 * qb), o)
    def on(qb): o = ar(Lreg(qb)); return mf(o, vr(V_ONES), vr(V_P + 4 * qb), o)
    for db in range(4):
        for qb in range(3): M.append(pv(db, qb))
    for qb in range(3): M.append(on(qb))
    for db in range(4): M.append(pv(db, 3))
    M.append(on(3))
    for db in range(4, 12):
        for qb in range(4): M.append(pv(db, qb))
    assert len(M) == 100
    gaps = [[] for _ in range(100)]
    for qb in range(4): softmax_gaps(gaps, qb, 12 * qb + 11)
    for db in range(6): gaps[1 + 2 * db].append(v_read(slot, db))
    nslot = (slot + 1) % 4
    gaps[BAR_GAP].append(I("s_barrier", waits=[f"dma{nslot}"]))
    dg = dma_group((slot + 3) % 4, dmaflags)
    g = BAR_GAP + 1
    gaps[g] += next_dma
    gaps[g].append(dg[0])
    pos = [61, 62, 63, 68, 'm', 69, 70]
    for ins, p in zip(dg[1:], pos):
        if p == 'm': gaps[68].append(ins)
        else: gaps[p].append(ins)
    vpos = {6: 64, 7: 65, 8: 66, 9: 67, 10: 72, 11: 76}
    for db, p in vpos.items(): gaps[p].append(v_read(slot, db))
    kpos = [71, 73, 74, 75, 77, 79, 81, 83, 85, 87, 89, 91]
    for f, p in enumerate(kpos): gaps[p].append(k_read(nslot, f))
    if extra: extra(gaps)
    L = []
    for m, g in zip(M, gaps): L.append(m); L.extend(g)
    return L

def attn_setup(A):
    A(f"s_mul_i32 s{S_W6144}, s{S_W}, 6144")
    A(f"v_lshlrev_b32 v{V_KA}, 4, v0"); A(f"v_add_u32 v{V_KB}, {2*TILE}, v{V_KA}")
    A("v_and_b32 v1, 15, v0"); A("v_lshrrev_b32 v2, 4, v0")
    A(f"v_mul_u32_u24 v{V_VA}, 3072, v2"); A(f"v_lshl_add_u32 v{V_VA}, v1, 4, v{V_VA}"); A(f"v_add_u32 v{V_VA}, 12288, v{V_VA}")
    A(f"v_add_u32 v{V_VB}, {2*TILE}, v{V_VA}")
    A(f"v_add_u32 v{V_D0}, s{S_W6144}, v{V_KA}"); A(f"v_add_u32 v{V_D1}, 4096, v{V_D0}")
    A(f"v_mul_u32_u24 v3, 384, v1"); A(f"v_lshl_add_u32 v3, v2, 4, v3")
    A(f"s_mul_i32 s{S_TMP}, s{S_W}, 24576")
    for qb in range(4):
        if qb: A(f"s_add_u32 s{S_TMP}, s{S_TMP}, 6144")
        for s in range(6): A(f"buffer_load_dwordx4 {Qreg(qb,s)}, v3, {sr(S_Q)}, s{S_TMP} offen offset:{64*s}")
    A("v_and_b32 v3, 3, v0"); A("v_cmp_eq_u32 vcc, 0, v3"); A(f"v_mov_b32 v3, 0x3f803f80")
    for r in range(4): A(f"v_cndmask_b32 v{V_ONES+r}, 0, v3, vcc")
def zero_acc(A):
    for i in range(208): A(f"v_accvgpr_write_b32 a{i}, 0")
def rowmax_to_negm(A, src, off):
    for qb in range(4):
        r = src(qb); t = V_P + 4 * qb
        A(f"v_max3_f32 v{t}, v{r[0]}, v{r[1]}, v{r[2]}") if len(r) > 1 else A(f"v_mov_b32 v{t}, v{r[0]}")
        if len(r) > 1: A(f"v_max_f32 v{t}, v{t}, v{r[3]}")
        A(f"v_mov_b32 v{t+1}, v{t}")
    for qb in range(4): t = V_P + 4 * qb; A(f"v_permlane32_swap_b32 v{t}, v{t+1}")
    for qb in range(4): t = V_P + 4 * qb; A(f"v_max_f32 v{t}, v{t}, v{t+1}"); A(f"v_mov_b32 v{t+1}, v{t}")
    for qb in range(4): t = V_P + 4 * qb; A(f"v_permlane16_swap_b32 v{t}, v{t+1}")
    for qb in range(4):
        t = V_P + 4 * qb; A(f"v_max_f32 v{t}, v{t}, v{t+1}")
        A(f"v_sub_f32 v{V_NM+4*qb}, {f2u(-off):#x}, v{t}")
        for r in range(1, 4): A(f"v_mov_b32 v{V_NM+4*qb+r}, v{V_NM+4*qb}")
def first_max(A):
    for qb in range(4):
        for s in range(6):
            S = vr(Sreg(qb, 0)); A(f"v_mfma_f32_16x16x32_bf16 {S}, {Kreg(0,s)}, {Qreg(qb,s)}, {'0' if s == 0 else S}")
    rowmax_to_negm(A, lambda qb: [Sreg(qb, 0) + r for r in range(4)], BOFF)
VOTE = 4 * TILE
def epilogue(A, stflags=""):
    RL = V_S
    for qb in range(4): A(f"v_accvgpr_read_b32 v{RL+4+qb}, a{Lreg(qb)}")
    for qb in range(4): A(f"v_rcp_f32 v{RL+qb}, v{RL+4+qb}")
    A(f"v_max_f32 v{RL+8}, v{RL+4}, v{RL+5}"); A(f"v_max3_f32 v{RL+8}, v{RL+8}, v{RL+6}, v{RL+7}")
    A(f"v_add_f32 v{RL+9}, v{RL+4}, v{RL+5}"); A(f"v_add_f32 v{RL+10}, v{RL+6}, v{RL+7}"); A(f"v_add_f32 v{RL+9}, v{RL+9}, v{RL+10}")
    A(f"v_cmp_nge_f32 vcc, 1.0, v{RL+8}"); A(f"v_cmp_u_f32 {sr(S_TMP,2)}, v{RL+9}, v{RL+9}")
    A(f"s_or_b64 vcc, vcc, {sr(S_TMP,2)}"); A(f"s_or_b32 s{S_TMP}, vcc_lo, vcc_hi")
    A(f"v_mov_b32 v{RL+8}, s{S_TMP}"); A(f"s_lshl_b32 s{S_TMP+1}, s{S_W}, 2"); A(f"s_add_u32 s{S_TMP+1}, s{S_TMP+1}, {VOTE}"); A(f"v_mov_b32 v{RL+9}, s{S_TMP+1}")
    A(f"ds_write_b32 v{RL+9}, v{RL+8}", tag="vote")
    A("v_and_b32 v3, 15, v0"); A("v_lshrrev_b32 v2, 4, v0"); A("v_mul_u32_u24 v3, 384, v3"); A("v_mul_u32_u24 v2, 24, v2"); A("v_add_u32 v3, v3, v2")
    A(f"s_mul_i32 s{S_TMP+2}, s{S_W}, 24576")
    T = V_K; k = 0
    for qb in range(4):
        if qb: A(f"s_add_u32 s{S_TMP+2}, s{S_TMP+2}, 6144")
        for e in range(4):
            t = T + (k % 3) * 16; k += 1
            for r in range(4):
                for j in range(3): A(f"v_accvgpr_read_b32 v{t+3*r+j}, a{Oreg(4*j+e, qb)+r}")
            for p in range(6): A(f"v_pk_mul_f32 {vr(t+2*p,2)}, {vr(t+2*p,2)}, {vr(RL+(qb&~1),2)} op_sel:[0,{qb&1}] op_sel_hi:[1,{qb&1}]")
            for p in range(6): A(f"v_cvt_pk_bf16_f32 v{t+p}, v{t+2*p}, v{t+2*p+1}")
            A(f"buffer_store_dwordx4 {vr(t)}, v3, {sr(S_OUT)}, s{S_TMP+2} offen offset:{96*e}{stflags}")
            A(f"buffer_store_dwordx2 {vr(t+4,2)}, v3, {sr(S_OUT)}, s{S_TMP+2} offen offset:{96*e+16}{stflags}")
def fallback_max(A):
    MX = V_V
    for qb in range(4): A(f"v_mov_b32 v{MX+qb}, 0xff800000")
    A(f"s_mov_b32 s{S_DMA}, 0")
    A("L_fb_loop:")
    for f in range(12):
        A(f"s_add_u32 s{S_TMP}, s{S_DMA}, {(f//4)*4096}")
        A(f"buffer_load_dwordx4 {vr(V_K+4*f)}, v{V_KA}, {sr(S_WS)}, s{S_TMP} offen offset:{(f%4)*1024} sc1")
    A("s_waitcnt vmcnt(0)")
    for qb in range(4):
        for tb in range(2):
            for s in range(6):
                S = vr(Sreg(qb, tb)); A(f"v_mfma_f32_16x16x32_bf16 {S}, {Kreg(tb,s)}, {Qreg(qb,s)}, {'0' if s == 0 else S}")
    for qb in range(4):
        for i in range(4): A(f"v_max3_f32 v{MX+qb}, v{MX+qb}, v{V_S+8*qb+2*i}, v{V_S+8*qb+2*i+1}")
    A(f"s_add_u32 s{S_DMA}, s{S_DMA}, {TILE}"); A(f"s_cmp_lt_u32 s{S_DMA}, {HEADWS}"); A("s_cbranch_scc1 L_fb_loop")
    rowmax_to_negm(A, lambda qb: [MX + qb], 0.0)

def gen_attn_phase1():
    P = []; A = lambda t, **k: P.append(I(t, **k))
    A("s_cmp_ge_u32 s2, 256"); A("s_cbranch_scc1 L_end")
    A(f"s_and_b32 s{S_H}, s2, 7"); A(f"s_lshr_b32 s{S_TMP}, s2, 6"); A(f"s_lshl_b32 s{S_TMP}, s{S_TMP}, 3"); A(f"s_add_u32 s{S_H}, s{S_H}, s{S_TMP}")
    A(f"s_bfe_u32 s{S_J}, s2, 0x30003")
    load_ptrs_and_srds(A, prod=False, attn=True)
    stamp(A, 0)
    attn_setup(A)
    A(f"s_mov_b32 s{S_PASS}, 0")
    R = []; A = lambda t, **k: R.append(I(t, **k))
    A("L_restart:")
    A(f"s_mov_b32 s{S_DMA}, 0")
    for t in range(3):
        R.extend(dma_group(t)); A(f"s_add_u32 s{S_DMA}, s{S_DMA}, {TILE}")
    A(f"s_sub_u32 s{S_DMA}, s{S_DMA}, {TILE}")
    stamp(A, 5)
    zero_acc(A)
    stamp(A, 6)
    A("s_barrier", waits=["dma0"])
    stamp(A, 7)
    for f in range(12): R.append(k_read(0, f))
    A(f"s_cmp_lg_u32 s{S_PASS}, 0"); A("s_cbranch_scc1 L_skipmax")
    F = []; A = lambda t, **k: F.append(I(t, **k))
    first_max(A)
    F2 = []; A = lambda t, **k: F2.append(I(t, **k))
    A("L_skipmax:"); A("s_waitcnt lgkmcnt(0)"); stamp(A, 1); A(f"s_mov_b32 s{S_CNT}, 16"); A("s_nop 7")
    B = [I(".p2align 6"), I("L_loop:")]
    for slot in range(4): B += iteration(slot, [I(f"s_add_u32 s{S_DMA}, s{S_DMA}, {TILE}")])
    B += [I(f"s_sub_u32 s{S_CNT}, s{S_CNT}, 1"), I(f"s_cmp_lg_u32 s{S_CNT}, 0"), I("s_cbranch_scc1 L_loop")]
    E = []; A = lambda t, **k: E.append(I(t, **k))
    stamp(A, 2)
    epilogue(A)
    stamp(A, 3)
    if PROF: A("s_waitcnt vmcnt(0)"); stamp(A, 4); stamps_out(A)
    A(f"v_mov_b32 v1, {VOTE}")
    A("s_barrier", waits=["vote"])
    A(f"ds_read_b128 {vr(V_S)}, v1")
    A(f"v_or3_b32 v1, v{V_S}, v{V_S+1}, v{V_S+2}"); A(f"v_or_b32 v1, v1, v{V_S+3}"); A(f"v_readfirstlane_b32 s{S_TMP}, v1")
    A(f"s_cmp_lg_u32 s{S_PASS}, 0"); A("s_cbranch_scc1 L_end")
    A(f"s_cmp_eq_u32 s{S_TMP}, 0"); A("s_cbranch_scc1 L_end")
    A("s_waitcnt vmcnt(0) lgkmcnt(0)")
    G = []; A = lambda t, **k: G.append(I(t, **k))
    fallback_max(A)
    A(f"s_mov_b32 s{S_PASS}, 1"); A("s_barrier"); A("s_branch L_restart")
    Z = [I("L_end:"), I("s_endpgm")]
    n = finalize([("P", P), ("R", R), ("F", F), ("F2", F2), ("B", B), ("B", B), ("E", E), ("G", G), ("G", G), ("R", R), ("F2", F2), ("B", B)])
    print("nops inserted", n, "loop instrs", len(B), file=sys.stderr)
    return "".join(text(x) for x in (P, R, F, F2, B, E, G, Z))

def file_phase1():
    s = HDR
    s += f"; @launch kernel=prepass_kernel grid=(2048,1,1) block=(256,1,1) lds=0\n"
    s += f"; @launch kernel={NAME}_kernel grid=(256,1,1) block=(256,1,1) lds={VOTE+64}\n"
    s += '.amdgcn_target "amdgcn-amd-amdhsa--gfx950"\n.text\n'
    s += khead("prepass_kernel") + gen_prepass()
    s += khead(NAME + "_kernel") + gen_attn_phase1()
    s += '.section .rodata,"a"\n.p2align 6\n' + kd("prepass_kernel", 128, 128) + ".p2align 6\n" + kd(NAME + "_kernel")
    return s
if __name__ == "__main__":
    PROF = "prof" in sys.argv
    open(sys.argv[1], "w").write(file_phase1())
```

```python
import sys
sys.path.insert(0, "dev")
import gen
from gen import *
gen.V_P = None
def Preg(qb): return V_S + 8 * qb
V_AT = 1; V_POLL = 2
V_Z = 10
V_PA = 184; V_T = 188; V_VB = 192; V_KA_ = 224; V_KB_ = 240
S_C3 = 3; S_W3072 = 37; S_J = gen.S_J; S_CNT = 41
S_N768 = 45; S_N384 = 46; S_N64 = 47; S_N768B = 49
S_PASS = 57; gen.S_PROF = 58
S_HOFF = 76; S_C768 = 77; S_C384 = 78; S_PTW = S_C768; S_T = 79
S_NON = 88; S_FLO = 90; S_PFL = 91; S_SITE = 100; S_SPIN = 101
S_C4 = S_C3; S_TN = 48
FLAGB = 32 * HEADWS
ST = " sc1"
VINT = 0
LDK = LDV = LDQ = " sc1 nt"
class Off:
    def __init__(s, o768, o768b, o384, o64): s.o768, s.o768b, s.o384, s.o64 = o768, o768b, o384, o64
NEXT = Off(S_N768, S_N768B, S_N384, S_N64); CUR = Off(S_C768, None, S_C384, None)
KLD, KSC, VLD, VSC = V_PA, V_PA + 1, V_PA + 2, V_PA + 3
def addr_setup(A):
    A(f"s_mul_i32 s{S_W3072}, s{S_W}, 3072")
    A(f"v_lshlrev_b32 v{V_KA}, 4, v0"); A(f"v_add_u32 v{V_KB}, {2*TILE}, v{V_KA}")
    A("v_and_b32 v1, 15, v0"); A("v_lshrrev_b32 v2, 4, v0")
    A(f"v_mul_u32_u24 v{KLD}, 768, v1"); A(f"v_lshl_add_u32 v{KLD}, v2, 5, v{KLD}")
    A(f"v_lshlrev_b32 v{KSC}, 4, v2")
    A(f"v_add_u32 v{V_D0}, s{S_W3072}, v{V_KA}"); A(f"v_add_u32 v{V_D1}, 12288, v{V_D0}")
    A(f"v_mul_u32_u24 v{VLD}, 12, v0"); A(f"v_add_u32 v{VLD}, s{S_W3072}, v{VLD}")
    A(f"s_lshr_b32 s{S_TMP}, s{S_W}, 1"); A(f"s_mul_i32 s{S_TMP}, s{S_TMP}, {16*768}")
    A(f"s_and_b32 s{S_TMP+1}, s{S_W}, 1"); A(f"s_mul_i32 s{S_TMP+2}, s{S_TMP+1}, 384"); A(f"s_add_u32 s{S_TMP}, s{S_TMP}, s{S_TMP+2}")
    A(f"v_add_u32 v{KLD}, s{S_TMP}, v{KLD}")
    A(f"s_mul_i32 s{S_TMP+2}, s{S_TMP+1}, 192"); A(f"v_add_u32 v{KSC}, s{S_TMP+2}, v{KSC}")
    A(f"v_and_b32 v3, 3, v0"); A(f"v_bfe_u32 v{VSC}, v0, 2, 1"); A(f"v_lshlrev_b32 v{VSC}, 5, v{VSC}"); A(f"v_lshl_add_u32 v{VSC}, v3, 1, v{VSC}")
    A(f"s_lshl_b32 s{S_TMP}, s{S_W}, 3"); A(f"v_add_u32 v{VSC}, s{S_TMP}, v{VSC}")
    A(f"v_mul_u32_u24 v{gen.V_VA}, 3072, v2"); A(f"v_lshl_add_u32 v{gen.V_VA}, v1, 4, v{gen.V_VA}"); A(f"v_add_u32 v{gen.V_VA}, 12288, v{gen.V_VA}")
    A(f"v_add_u32 v{gen.V_VB}, {2*TILE}, v{gen.V_VA}")
def set_off(A, off, st, ptw=None):
    A(f"s_mul_i32 s{off.o768}, s{st}, {32*768}")
    if off.o768b is not None: A(f"s_add_u32 s{off.o768b}, s{off.o768}, {16*768}")
    A(f"s_mul_i32 s{off.o384}, s{st}, 384")
    if off.o64 is not None: A(f"s_lshl_b32 s{off.o64}, s{st}, 6")
def k_loads(i, R, off):
    return [I(f"buffer_load_dwordx4 {vr(R)}, v{KLD}, {sr(S_QK)}, s{off.o768} offen offset:{128*i}{LDK}"),
            I(f"buffer_load_dwordx4 {vr(R+4)}, v{KLD}, {sr(S_QK)}, s{off.o768} offen offset:{128*i+16}{LDK}"),
            I(f"buffer_load_dwordx4 {vr(R+8)}, v{KSC}, {sr(S_KZ)}, s{off.o384} offen offset:{64*i}"),
            I(f"buffer_load_dwordx4 {vr(R+12)}, v{KSC}, {sr(S_KS)}, s{off.o384} offen offset:{64*i}")]
def k_comp(R, T):
    c = []
    for p in range(4):
        a, b = R + 2 * p, R + 2 * p + 1; z = R + 8 + p; s = R + 12 + p
        c += [f"v_cvt_f32_i32 v{a}, v{a}", f"v_cvt_f32_i32 v{b}, v{b}",
              f"v_lshlrev_b32 v{T}, 16, v{z}", f"v_and_b32 v{T+1}, s{S_MASK}, v{z}",
              rnd(a, a), rnd(b, b),
              f"v_lshlrev_b32 v{T+2}, 16, v{s}", f"v_and_b32 v{T+3}, s{S_MASK}, v{s}",
              f"v_pk_add_f32 {vr(a,2)}, {vr(a,2)}, {vr(T,2)} neg_lo:[0,1] neg_hi:[0,1]",
              f"v_pk_mul_f32 {vr(T+2,2)}, {vr(T+2,2)}, {sr(S_C,2)}",
              rnd(a, a), rnd(b, b),
              f"v_pk_mul_f32 {vr(a,2)}, {vr(a,2)}, {vr(T+2,2)}",
              f"v_cvt_pk_bf16_f32 v{z}, v{a}, v{b}"]
    return [I(x) for x in c]
def k_store(i, R, ptw, glob=True, slot=None):
    o = []
    if glob: o.append(I(f"buffer_store_dwordx4 {vr(R+8)}, v{V_D0}, {sr(S_WS)}, s{ptw} offen offset:{1024*i}{ST}", tag="pst"))
    if slot is not None: o.append(I(f"ds_write_b128 v{V_D0}, {vr(R+8)} offset:{slot*TILE+1024*i}", tag="pds"))
    return o
def v_loads(R, Z, off):
    ld = [I(f"buffer_load_short_d16_hi v{Z}, v{VSC}, {sr(S_VZ)}, s{off.o64} offen"),
          I(f"buffer_load_short_d16_hi v{Z+1}, v{VSC}, {sr(S_VS)}, s{off.o64} offen")]
    for t in range(8):
        ld.append(I(f"buffer_load_dwordx3 {vr(R+4*t,3)}, v{VLD}, {sr(S_QV)}, s{off.o768 if t < 4 else off.o768b} offen offset:{768*(t%4)}{LDV}"))
    return ld
def v_comp(R, X, Z):
    c = []
    for t in range(8): c.append(f"v_readlane_b32 s{S_VZS+t}, v{Z}, {t}")
    for t in range(8): c.append(f"v_readlane_b32 s{S_VSS+t}, v{Z+1}, {t}")
    out = [R, R + 4, X]
    for u in range(4):
        g = R + 8 * u
        c += [f"v_cvt_f32_i32 v{g+7}, v{g+6}", f"v_cvt_f32_i32 v{g+6}, v{g+2}", f"v_cvt_f32_i32 v{g+2}, v{g+1}",
              f"v_cvt_f32_i32 v{g+3}, v{g+5}", f"v_cvt_f32_i32 v{g+1}, v{g+4}", f"v_cvt_f32_i32 v{g}, v{g}"]
        pr = [g, g + 2, g + 6]
        if not VINT:
          for p in (pr[2], pr[1], pr[0]): c += [rnd(p, p), rnd(p + 1, p + 1)]
          for p in (pr[2], pr[1], pr[0]): c.append(f"v_pk_add_f32 {vr(p,2)}, {vr(p,2)}, {sr(S_VZS+2*u,2)} neg_lo:[0,1] neg_hi:[0,1]")
          for p in (pr[2], pr[1], pr[0]): c += [rnd(p, p), rnd(p + 1, p + 1)]
          for p in (pr[2], pr[1], pr[0]): c.append(f"v_pk_mul_f32 {vr(p,2)}, {vr(p,2)}, {sr(S_VSS+2*u,2)}")
        elif VINT == 2:
          for p in (pr[2], pr[1], pr[0]): c.append(f"v_pk_add_f32 {vr(p,2)}, {vr(p,2)}, 4.0 op_sel_hi:[1,0] neg_lo:[0,1] neg_hi:[0,1]")
        for j in (2, 1, 0): c.append(f"v_cvt_pk_bf16_f32 v{out[j]+u}, v{pr[j]}, v{pr[j]+1}")
    return [I(x) for x in c]
def v_store(R, X, ptw, glob=True, slot=None):
    out = [R, R + 4, X]; o = []
    for j in range(3):
        if glob: o.append(I(f"buffer_store_dwordx4 {vr(out[j])}, v{V_D1}, {sr(S_WS)}, s{ptw} offen offset:{1024*j}{ST}", tag="pst"))
        if slot is not None: o.append(I(f"ds_write_b128 v{V_D1}, {vr(out[j])} offset:{slot*TILE+1024*j}", tag="pds"))
    return o
DMAF = " sc1"
def dma_group(slot):
    out = [I(f"s_add_u32 m0, s{S_W3072}, {slot*TILE}")]
    for k in range(3): out.append(I(f"buffer_load_dwordx4 v{V_D0}, {sr(S_WS)}, s{S_DMA} offen offset:{1024*k}{DMAF} lds", tag=f"dma{slot}"))
    out.append(I(f"s_add_u32 m0, s{S_W3072}, {slot*TILE+12288}"))
    for k in range(3): out.append(I(f"buffer_load_dwordx4 v{V_D1}, {sr(S_WS)}, s{S_DMA} offen offset:{1024*k}{DMAF} lds", tag=f"dma{slot}"))
    return out
def poll(dst=V_POLL, so=S_FLO): return I(f"buffer_load_dwordx2 {vr(dst,2)}, v{V_AT}, {sr(S_WS)}, s{so} offen sc1")
def post():
    return [I(f"v_mov_b32 v{V_T}, s{S_NON}"), I(f"v_mov_b32 v{V_T+1}, s{S_NON+1}"),
            I(f"buffer_store_dwordx2 {vr(V_T,2)}, v{V_AT}, {sr(S_WS)}, s{S_PFL} offen sc1", waits=["pst"]),
            I(f"s_add_u32 s{S_PFL}, s{S_PFL}, {8*512}")]
def cmpflag(src=V_POLL): return I(f"v_cmp_eq_u64 vcc, {sr(S_NON,2)}, {vr(src,2)}")
SITES = []
def check_site():
    n = len(SITES); SITES.append(n)
    return [I(f"s_cbranch_vccz L_slow{n}"), I(f"L_ret{n}:")]
def next_tile():
    return [I(f"s_mul_i32 s{S_DMA}, s{S_TN}, {TILE}"), I(f"s_mov_b32 s{S_T}, s{S_TN}"), I(f"s_add_u32 s{S_C4}, s{S_C4}, 1"), I(f"s_xor_b32 s{S_TN}, s{S_C4}, s{S_J}"),
            I(f"s_and_b32 s{S_TN}, s{S_TN}, 63"), I(f"s_lshl_b32 s{S_FLO}, s{S_TN}, 9")]
def softmax_gaps(gaps, qb, g0):
    s0, s1, p = Sreg(qb, 0), Sreg(qb, 1), Preg(qb)
    for r in range(4): gaps[g0 + 1 + r].append(I(f"v_exp_f32 v{s0+r}, v{s0+r}"))
    gaps[g0 + 5] += [I(f"v_cvt_pk_bf16_f32 v{p}, v{s0}, v{s0+1}"), I(f"v_cvt_pk_bf16_f32 v{p+1}, v{s0+2}, v{s0+3}")]
    for r in range(4): gaps[g0 + 6 + r].append(I(f"v_exp_f32 v{s1+r}, v{s1+r}"))
    gaps[g0 + 10] += [I(f"v_cvt_pk_bf16_f32 v{p+2}, v{s1}, v{s1+1}"), I(f"v_cvt_pk_bf16_f32 v{p+3}, v{s1+2}, v{s1+3}")]
BG = 59
def iter_parts(slot, do_post=False, do_poll=True, chk=True):
    M = []
    for qb in range(4):
        for tb in range(2):
            for s in range(6):
                S = vr(Sreg(qb, tb))
                M.append(mf(S, Kreg(tb, s), Qreg(qb, s), vr(V_NM + 4 * qb) if s == 0 else S))
    def pv(db, qb): o = ar(Oreg(db, qb)); return mf(o, vr(V_V + 4 * (db % 6)), vr(Preg(qb)), o)
    def on(qb): o = ar(Lreg(qb)); return mf(o, vr(V_ONES), vr(Preg(qb)), o)
    for db in range(4):
        for qb in range(3): M.append(pv(db, qb))
    for qb in range(3): M.append(on(qb))
    for db in range(4): M.append(pv(db, 3))
    M.append(on(3))
    for db in range(4, 12):
        for qb in range(4): M.append(pv(db, qb))
    gaps = [[] for _ in range(100)]
    for qb in range(4): softmax_gaps(gaps, qb, 12 * qb + 11)
    for db in range(6): gaps[1 + 2 * db].append(v_read(slot, db))
    nslot = (slot + 1) % 4
    nt = next_tile()
    gaps[48] += nt[0:2]; gaps[49] += nt[2:4]; gaps[50] += nt[4:6]
    if chk: gaps[57].append(cmpflag())
    gaps[BG] += [I("s_barrier", waits=[f"dma{nslot}"] + (["pst"] if (do_post or not chk) else []))]
    gaps[BG + 1] += (check_site() if chk else []) + ([*post()] if do_post else []) + ([poll()] if do_poll else [])
    dg = dma_group((slot + 3) % 4)
    for ins, p in zip(dg, [61, 61, 62, 63, 67, 68, 69, 70]): gaps[p].append(ins)
    for db, p in {6: 64, 7: 65, 8: 66, 9: 67, 10: 72, 11: 76}.items(): gaps[p].append(v_read(slot, db))
    for f, p in enumerate([71, 73, 74, 75, 77, 79, 81, 83, 85, 87, 89, 91]): gaps[p].append(k_read(nslot, f))
    return M, gaps
def cost(ins): return 0 if ins.kind == "label" else (2 if ins.kind == "trans" else 1)
def place(stream, gl, start, end, cap=2):
    slots = []
    for x in range(start, end):
        g = gl[x // 100][x % 100]
        if x % 100 in (BG, BG + 1): continue
        slots += [x] * max(0, cap - sum(cost(i) for i in g))
    if len(slots) < len(stream): return place(stream, gl, start, end, cap + 1)
    for k, ins in enumerate(stream):
        x = slots[(k * len(slots)) // len(stream)]
        gl[x // 100][x % 100].append(ins)
def sg_adv():
    return [I(f"s_mov_b32 s{S_C768}, s{S_N768}"), I(f"s_mov_b32 s{S_C384}, s{S_N384}"),
            I(f"s_add_u32 s{S_N768}, s{S_N768}, {8*TILE}"), I(f"s_add_u32 s{S_N768B}, s{S_N768B}, {8*TILE}"),
            I(f"s_add_u32 s{S_N384}, s{S_N384}, {8*384}"), I(f"s_add_u32 s{S_N64}, s{S_N64}, 512")]
def prod_stream():
    A_, B_ = V_KA_, V_KB_
    s = []
    s += k_comp(B_, V_T) + k_store(1, B_, S_PTW) + k_loads(1, B_, NEXT)
    s += k_comp(A_, V_T) + k_store(0, A_, S_PTW) + k_loads(2, A_, CUR)
    s += v_comp(V_VB, V_T, V_Z) + v_store(V_VB, V_T, S_PTW) + v_loads(V_VB, V_Z, NEXT)
    s += k_comp(A_, V_T) + k_store(2, A_, S_PTW) + k_loads(0, A_, NEXT)
    s += sg_adv()
    return s
def first_streams():
    A_, B_ = V_KA_, V_KB_
    ld = k_loads(0, A_, NEXT) + k_loads(1, B_, NEXT) + v_loads(V_VB, V_Z, NEXT) + sg_adv()
    m = k_comp(A_, V_T) + k_store(0, A_, S_PTW) + k_loads(2, A_, CUR)
    m += k_comp(B_, V_T) + k_store(1, B_, S_PTW)
    m += v_comp(V_VB, V_T, V_Z) + v_store(V_VB, V_T, S_PTW)
    m += k_comp(A_, V_T) + k_store(2, A_, S_PTW)
    tl = k_loads(1, B_, NEXT) + k_loads(0, A_, NEXT) + v_loads(V_VB, V_Z, NEXT) + sg_adv()
    return ld, m, tl
def block(label, n, prod, cnt_reg):
    own = {8: (1,), 12: (5,), 4: ()}[n]
    pe = n - 8 + CFG["peB"] if prod else -1
    late = (CFG["late"],) if n == 12 else ()
    parts = [iter_parts(i % 4, do_post=(i == pe), do_poll=(i + 1 not in own and i not in late), chk=(i not in own)) for i in range(n)]
    gl = [p[1] for p in parts]
    for i in late: gl[i + 1][CFG["lateg"]].append(poll())
    if n == 12:
        ld, m, tl = first_streams()
        pg = CFG["pg"]
        gl[pg // 100][pg % 100] += post()
        place(ld, gl, CFG["l0"], CFG["l1"]); place(m, gl, CFG["m0"], CFG["m1"]); place(tl, gl, CFG["t0"], CFG["t1"])
        place(prod_stream(), gl, CFG["s0"], pe * 100 - CFG['pm'])
    elif prod: place(prod_stream(), gl, 0, pe * 100 - CFG['pm'])
    L = [I(".p2align 6"), I(f"{label}:")]
    for M, gaps in parts:
        for m, g in zip(M, gaps): L.append(m); L.extend(g)
    if n != 12: L += [I(f"s_sub_u32 s{cnt_reg}, s{cnt_reg}, 1"), I(f"s_cmp_lg_u32 s{cnt_reg}, 0"), I(f"s_cbranch_scc1 {label}")]
    return L
SPIN_LIMIT = 40
def wait_routine():
    L = []; A = lambda t, **k: L.append(I(t, **k))
    X = V_K
    for n in SITES: A(f"L_slow{n}:"); A(f"s_mov_b32 s{S_SITE}, {n}"); A("s_branch L_wait")
    A("L_wait:"); A("s_waitcnt vmcnt(0) lgkmcnt(0)"); A(f"s_mov_b32 s{S_SPIN}, {SPIN_LIMIT}")
    A("L_spin:")
    if gen.PROF: A(f"s_add_u32 s{gen.S_TS+7}, s{gen.S_TS+7}, 100")
    A(f"s_lshl_b32 s{S_TMP}, s{S_T}, 9")
    L.append(poll(X, S_TMP)); A("s_waitcnt vmcnt(0)")
    L.append(cmpflag(X)); A("s_nop 4"); A("s_cbranch_vccnz L_wret")
    A("s_sleep 4"); A(f"s_sub_u32 s{S_SPIN}, s{S_SPIN}, 1"); A(f"s_cmp_lg_u32 s{S_SPIN}, 0"); A("s_cbranch_scc1 L_spin")
    SV = Sreg(0, 1); T = Sreg(1, 1); Z = Sreg(2, 1)
    for i in range(16): A(f"v_writelane_b32 v{SV}, s{S_VZS+i}, {i}")
    E = Off(S_TMP + 2, S_TMP + 3, S_TMP + 4, S_TMP + 5)
    set_off(A, E, S_T)
    A(f"v_mov_b32 v{Z}, 0"); A(f"v_mov_b32 v{Z+1}, 0")
    for i in range(3): L.extend(k_loads(i, X + 16 * i, E))
    for i in range(3): L.extend(k_comp(X + 16 * i, T)); L.extend(k_store(i, X + 16 * i, E.o768))
    A("s_nop 1")
    L.extend(v_loads(X, Z, E)); L.extend(v_comp(X, T, Z)); L.extend(v_store(X, T, E.o768))
    for i in range(16): A(f"v_readlane_b32 s{S_VZS+i}, v{SV}, {i}")
    A("s_waitcnt vmcnt(0)")
    A("L_wret:"); A("s_nop 7")
    for n in SITES[:-1]: A(f"s_cmp_eq_u32 s{S_SITE}, {n}"); A(f"s_cbranch_scc1 L_ret{n}")
    A(f"s_branch L_ret{SITES[-1]}")
    return L

def interleave(main, extra, start=0, every=None):
    if not extra: return main
    n = len(main) - start
    out = main[:start]; k = 0
    for i, ins in enumerate(main[start:]):
        out.append(ins)
        while k < len(extra) and (k + 1) * n <= (i + 1) * len(extra) * 1.0 + 1e-9 if every is None else (k < len(extra) and i % every == every - 1 and not out[-1] is extra[k-1]):
            out.append(extra[k]); k += 1
            if every is not None: break
    out += extra[k:]
    return out
CFG = dict(tlb=1, ipf=1, nB=5, nC=3, peB=7, pm=5, q1=0.5, q2=1.5, q3=2.5, q4=4, q5=4, d2late=1, late=5, lateg=8, pg=540, l0=10, l1=200, m0=220, m1=480, t0=500, t1=600, s0=620)
def rowmax2(A, src, off):
    gen.V_P = V_V
    rowmax_to_negm(A, src, off)
def gen_coop():
    SITES.clear()
    P = []; A = lambda t, **k: P.append(I(t, **k))
    A("s_cmp_ge_u32 s2, 256"); A("s_cbranch_scc1 L_end")
    A(f"s_and_b32 s{S_H}, s2, 7"); A(f"s_lshr_b32 s{S_TMP}, s2, 6"); A(f"s_lshl_b32 s{S_TMP}, s{S_TMP}, 3"); A(f"s_add_u32 s{S_H}, s{S_H}, s{S_TMP}")
    A(f"s_bfe_u32 s{S_J}, s2, 0x30003")
    if CFG["ipf"]:
        A(f"s_getpc_b64 {sr(S_VZS,2)}"); A("L_pc:"); A(f"s_mov_b32 s{S_VZS+2}, L_codeend-L_pc"); A(f"s_mov_b32 s{S_VZS+3}, 0x00020000")
        A(f"s_bfe_u32 s{S_VZS+4}, s2, 0x50003"); A(f"s_lshl_b32 s{S_VZS+4}, s{S_VZS+4}, 12"); A("v_lshlrev_b32 v1, 4, v0")
        A(f"buffer_load_dwordx4 v[252:255], v1, {sr(S_VZS)}, s{S_VZS+4} offen")
    load_ptrs_and_srds(A, prod=True, attn=True)
    stamp(A, 0)
    if gen.PROF: A(f"s_mov_b32 s{gen.S_TS+7}, 0")
    A(f"s_memrealtime {sr(S_NON,2)}")
    A(f"s_mov_b32 s{S_WS+2}, {64<<20:#x}")
    if CFG["tlb"]:
        A(f"buffer_load_dword v248, off, {sr(S_Q)}, 0"); A(f"s_mul_i32 s{S_TMP}, s{S_J}, {TILE}"); A(f"buffer_load_dword v249, off, {sr(S_WS)}, s{S_TMP}")
        A(f"s_sub_u32 s{S_TMP}, 32, s{S_H}"); A(f"s_mul_i32 s{S_TMP}, s{S_TMP}, {HEADWS}"); A(f"buffer_load_dword v250, off, {sr(S_WS)}, s{S_TMP}")
        A(f"buffer_load_dword v251, off, {sr(S_OUT)}, 0")
    addr_setup(A)
    O0 = Off(S_TMP + 2, S_TMP + 3, S_TMP + 4, S_TMP + 5)
    O1 = NEXT
    set_off(A, O0, S_J)
    K0, VV0, T0, Z0 = 64, 112, 144, 148
    K1, VV1, T1, Z1 = 192, 150, V_T, V_Z
    NV = V_ONES
    for z in (Z0, Z0 + 1, Z1, Z1 + 1): A(f"v_mov_b32 v{z}, 0")
    for i in range(3): P.extend(k_loads(i, K0 + 16 * i, O0))
    P.extend(v_loads(VV0, Z0, O0))
    A(f"s_or_b32 s{S_NON}, s{S_NON}, 1"); A(f"s_lshl_b32 s{S_HOFF}, s{S_H}, 3")
    A(f"v_lshl_add_u32 v3, s{S_W}, 6, v0"); A(f"v_lshlrev_b32 v3, 12, v3")
    A(f"v_mov_b32 v{NV}, s{S_NON}"); A(f"v_mov_b32 v{NV+1}, s{S_NON+1}"); A(f"v_mov_b32 v{NV+2}, 0"); A(f"v_mov_b32 v{NV+3}, 0")
    A(f"buffer_atomic_cmpswap_x2 {vr(NV)}, v3, {sr(S_DBG)}, s{S_HOFF} offen sc0 sc1")
    A("v_and_b32 v1, 15, v0"); A("v_lshrrev_b32 v2, 4, v0"); QV = 152; A(f"v_mul_u32_u24 v{QV}, 384, v1"); A(f"v_lshl_add_u32 v{QV}, v2, 4, v{QV}")
    A(f"s_mul_i32 s{S_TMP+6}, s{S_W}, 24576")
    qpos = [0]
    def qissue(upto):
        n = int(round(upto * 6))
        while qpos[0] < n:
            qb, s_ = divmod(qpos[0], 6)
            if qb and s_ == 0: A(f"s_add_u32 s{S_TMP+6}, s{S_TMP+6}, 6144")
            A(f"buffer_load_dwordx4 {Qreg(qb,s_)}, v{QV}, {sr(S_Q)}, s{S_TMP+6} offen offset:{64*s_}{LDQ}")
            qpos[0] += 1
    qissue(CFG["q1"])
    A(f"s_mov_b32 s{S_C768}, s{O0.o768}")
    A(f"s_mov_b32 s{S_PASS}, 0"); A(f"s_lshl_b32 s{S_PFL}, s{S_J}, 9")
    A(f"s_sub_u32 s{S_TMP}, 32, s{S_H}"); A(f"s_mul_i32 s{S_TMP}, s{S_TMP}, {HEADWS}"); A(f"s_lshl_b32 s{S_TMP+1}, s{S_H}, 15"); A(f"s_add_u32 s{S_TMP}, s{S_TMP}, s{S_TMP+1}")
    A(f"s_lshl_b32 s{S_TMP+1}, s{S_W}, 7"); A(f"s_add_u32 s{S_TMP}, s{S_TMP}, s{S_TMP+1}")
    A(f"v_mov_b32 v2, s{S_TMP}"); A(f"v_bfrev_b32 v{V_AT}, 1"); A("v_cmp_eq_u32 vcc, 0, v0"); A(f"v_cndmask_b32 v{V_AT}, v{V_AT}, v2, vcc")
    stamp(A, 8)
    for i in range(3): P.extend(k_comp(K0 + 16 * i, T0) + k_store(i, K0 + 16 * i, S_C768, True, 0))
    P.extend(v_comp(VV0, T0, Z0) + v_store(VV0, T0, S_C768, True, 0))
    A(f"v_readfirstlane_b32 s{S_TMP}, v{NV}"); A(f"v_readfirstlane_b32 s{S_TMP+1}, v{NV+1}")
    A(f"s_cmp_eq_u64 {sr(S_TMP,2)}, 0"); A(f"s_cselect_b64 {sr(S_NON,2)}, {sr(S_NON,2)}, {sr(S_TMP,2)}")
    A(f"v_mov_b32 v{NV}, s{S_NON}"); A(f"v_mov_b32 v{NV+1}, s{S_NON+1}")
    A(f"s_lshl_b32 s{S_TMP}, s{S_W}, 3"); A(f"v_mov_b32 v{NV+2}, s{S_TMP}")
    A(f"v_add_u32 v{NV+2}, {VOTE+16}, v{NV+2}")
    A(f"ds_write_b64 v{NV+2}, {vr(NV,2)}", tag="pds")
    qissue(CFG["q2"])
    stamp(A, 9)
    A(f"v_mov_b32 v{NV+2}, {VOTE+16}")
    A("s_barrier", waits=["pds"])
    A(f"ds_read_b64 {vr(NV,2)}, v{NV+2}")
    for f in range(12): P.append(k_read(0, f))
    zero_acc(A)
    A(f"v_readfirstlane_b32 s{S_NON}, v{NV}"); A(f"v_readfirstlane_b32 s{S_NON+1}, v{NV+1}")
    P.extend(post())
    A("v_and_b32 v2, 3, v0"); A("v_cmp_eq_u32 vcc, 0, v2"); A(f"v_mov_b32 v2, 0x3f803f80")
    for r in range(4): A(f"v_cndmask_b32 v{V_ONES+r}, 0, v2, vcc")
    stamp(A, 10)
    qissue(CFG["q3"])
    PX = 144
    for x in (1, 2):
        A(f"s_xor_b32 s{S_T}, s{S_J}, {x}"); A(f"s_lshl_b32 s{S_TMP}, s{S_T}, 9"); P.append(poll(PX + 2 * (x - 1), S_TMP))
    qissue(CFG["q4"])
    for x in (1, 2):
        A(f"s_xor_b32 s{S_T}, s{S_J}, {x}")
        P.append(cmpflag(PX + 2 * (x - 1))); A(f"s_mul_i32 s{S_DMA}, s{S_T}, {TILE}"); A("s_waitcnt lgkmcnt(0)"); A("s_nop 3")
        n = len(SITES); SITES.append(n)
        A(f"s_cbranch_vccnz L_go{x}"); A(f"s_mov_b32 s{S_SITE}, {n}"); A("s_branch L_wait"); A(f"L_ret{n}:")
        for f in range(12): P.append(k_read(0, f))
        A("s_waitcnt lgkmcnt(0)")
        A(f"L_go{x}:")
        stamp(A, 10 + x)
        if x == 2 and CFG["d2late"]: D2 = dma_group(x)
        else: P.extend(dma_group(x))
        if x == 1: qissue(CFG["q5"])
    qissue(4)
    A(f"s_mov_b32 s{S_C4}, 3"); A(f"s_xor_b32 s{S_TN}, s{S_J}, 3"); A(f"s_lshl_b32 s{S_FLO}, s{S_TN}, 9"); P.append(poll())
    A(f"s_add_u32 s{S_TMP}, s{S_J}, 8"); set_off(A, NEXT, S_TMP)
    gen.V_P = V_V
    first_max(A)
    if CFG["d2late"]: P.extend(D2)
    stamp(A, 1)
    BA = block("L_loopA", 12, True, S_CNT)
    X1 = [I(f"s_mov_b32 s{S_CNT}, {CFG['nB']}")]; stamp(lambda t: X1.append(I(t)), 5)
    BB = block("L_loopB", 8, True, S_CNT)
    X2 = [I(f"s_mov_b32 s{S_CNT}, {CFG['nC']}")]; stamp(lambda t: X2.append(I(t)), 6)
    BC = block("L_loopC", 4, False, S_CNT)
    E = []; A = lambda t, **k: E.append(I(t, **k))
    stamp(A, 2)
    epilogue(A, CFG.get("ostf", ""))
    stamp(A, 3)
    if gen.PROF: A("s_waitcnt vmcnt(0)"); stamp(A, 4); stamps_out(A)
    A(f"v_mov_b32 v{V_S+4}, {VOTE}")
    A("s_barrier", waits=["vote"])
    A(f"ds_read_b128 {vr(V_S)}, v{V_S+4}")
    A(f"v_or3_b32 v{V_S+4}, v{V_S}, v{V_S+1}, v{V_S+2}"); A(f"v_or_b32 v{V_S+4}, v{V_S+4}, v{V_S+3}"); A(f"v_readfirstlane_b32 s{S_TMP}, v{V_S+4}")
    A(f"s_cmp_lg_u32 s{S_PASS}, 0"); A("s_cbranch_scc1 L_end")
    A(f"s_cmp_eq_u32 s{S_TMP}, 0"); A("s_cbranch_scc1 L_end")
    A("s_waitcnt vmcnt(0) lgkmcnt(0)")
    G = []; A = lambda t, **k: G.append(I(t, **k))
    A(f"s_xor_b32 s{S_T}, s{S_J}, 1"); A(f"s_lshl_b32 s{S_TMP}, s{S_T}, 9"); G.append(poll(V_POLL, S_TMP)); G.append(cmpflag()); A("s_nop 4"); G.extend(check_site())
    A("s_barrier")
    gen.V_P = V_V + 4
    fallback_max(A)
    A(f"s_mov_b32 s{S_PASS}, 1")
    for t in range(3):
        A(f"s_xor_b32 s{S_T}, s{S_J}, {t}"); A(f"s_mul_i32 s{S_DMA}, s{S_T}, {TILE}"); G.extend(dma_group(t))
    zero_acc(A)
    A(f"s_mov_b32 s{S_C4}, 3"); A(f"s_xor_b32 s{S_TN}, s{S_J}, 3"); A(f"s_lshl_b32 s{S_FLO}, s{S_TN}, 9"); G.append(poll())
    A("s_waitcnt vmcnt(0)"); A("s_barrier")
    for f in range(12): G.append(k_read(0, f))
    A("s_waitcnt lgkmcnt(0)"); A(f"s_mov_b32 s{S_CNT}, 16"); A("s_nop 7"); A("s_branch L_loopC")
    W = wait_routine()
    Z = [I("L_end:"), I("s_endpgm"), I("L_codeend:")]
    n = finalize([("P", P), ("A", BA), ("x", X1), ("B", BB), ("B", BB), ("x", X2), ("C", BC), ("C", BC), ("E", E), ("G", G), ("C", BC), ("C", BC)],
                 [("P", P), ("A", BA), ("x", X1), ("B", BB), ("x", X2), ("C", BC), ("E", E)],
                 [("W", W)])
    print("nops", n, "sizes", len(P), len(BA), len(BB), len(BC), len(E), len(G), len(W), file=sys.stderr)
    return "".join(text(x) for x in (P, BA, X1, BB, X2, BC, E, G, W, Z))
def file_coop():
    s = HDR + f"; @launch grid=(256,1,1) block=(256,1,1) lds={VOTE+64}\n"
    s += '.amdgcn_target "amdgcn-amd-amdhsa--gfx950"\n.text\n'
    s += khead(NAME + "_kernel") + gen_coop()
    s += '.section .rodata,"a"\n.p2align 6\n' + kd(NAME + "_kernel")
    return s
if __name__ == "__main__":
    gen.PROF = 3 if "prof3" in sys.argv else 2 if "prof2" in sys.argv else ("prof" in sys.argv)
    if "cyc" in sys.argv: gen.CLK = "s_memtime"
    for a in sys.argv[2:]:
        if "=" in a:
            k, v = a.split("=")
            if k in globals(): globals()[k] = eval(v)
            else: CFG[k] = eval(v)
    open(sys.argv[1], "w").write(file_coop())
```

```python
import sys
sys.path.insert(0, "dev")
import gen
from gen import *
gen.V_P = None
def Preg(qb): return V_S + 8 * qb
V_AT = 1; V_POLL = 2
V_Z = 10
V_PA = 184; V_T = 188; V_VB = 192; V_KA_ = 224; V_KB_ = 240
S_C3 = 3; S_W3072 = 37; S_J = gen.S_J; S_CNT = 41
S_N768 = 45; S_N384 = 46; S_N64 = 47; S_N768B = 49
S_PASS = 57; gen.S_PROF = 58
S_HOFF = 76; S_C768 = 77; S_C384 = 78; S_PTW = S_C768; S_T = 79
S_NON = 88; S_FLO = 90; S_PFL = 91; S_SITE = 100; S_SPIN = 101
S_C4 = S_C3; S_TN = 48
FLAGB = 32 * HEADWS
ST = " sc1"
VINT = 0
DPROF = 0
LDK = LDV = LDQ = " sc1 nt"
class Off:
    def __init__(s, o768, o768b, o384, o64): s.o768, s.o768b, s.o384, s.o64 = o768, o768b, o384, o64
NEXT = Off(S_N768, S_N768B, S_N384, S_N64); CUR = Off(S_C768, None, S_C384, None)
KLD, KSC, VLD, VSC = V_PA, V_PA + 1, V_PA + 2, V_PA + 3
def addr_setup(A):
    A(f"s_mul_i32 s{S_W3072}, s{S_W}, 3072")
    A(f"v_lshlrev_b32 v{V_KA}, 4, v0"); A(f"v_add_u32 v{V_KB}, {2*TILE}, v{V_KA}")
    A("v_and_b32 v1, 15, v0"); A("v_lshrrev_b32 v2, 4, v0")
    A(f"v_mul_u32_u24 v{KLD}, 768, v1"); A(f"v_lshl_add_u32 v{KLD}, v2, 5, v{KLD}")
    A(f"v_lshlrev_b32 v{KSC}, 4, v2")
    A(f"v_add_u32 v{V_D0}, s{S_W3072}, v{V_KA}"); A(f"v_add_u32 v{V_D1}, 12288, v{V_D0}")
    A(f"v_mul_u32_u24 v{VLD}, 12, v0"); A(f"v_add_u32 v{VLD}, s{S_W3072}, v{VLD}")
    A(f"s_lshr_b32 s{S_TMP}, s{S_W}, 1"); A(f"s_mul_i32 s{S_TMP}, s{S_TMP}, {16*768}")
    A(f"s_and_b32 s{S_TMP+1}, s{S_W}, 1"); A(f"s_mul_i32 s{S_TMP+2}, s{S_TMP+1}, 384"); A(f"s_add_u32 s{S_TMP}, s{S_TMP}, s{S_TMP+2}")
    A(f"v_add_u32 v{KLD}, s{S_TMP}, v{KLD}")
    A(f"s_mul_i32 s{S_TMP+2}, s{S_TMP+1}, 192"); A(f"v_add_u32 v{KSC}, s{S_TMP+2}, v{KSC}")
    A(f"v_and_b32 v3, 3, v0"); A(f"v_bfe_u32 v{VSC}, v0, 2, 1"); A(f"v_lshlrev_b32 v{VSC}, 5, v{VSC}"); A(f"v_lshl_add_u32 v{VSC}, v3, 1, v{VSC}")
    A(f"s_lshl_b32 s{S_TMP}, s{S_W}, 3"); A(f"v_add_u32 v{VSC}, s{S_TMP}, v{VSC}")
    A(f"v_mul_u32_u24 v{gen.V_VA}, 3072, v2"); A(f"v_lshl_add_u32 v{gen.V_VA}, v1, 4, v{gen.V_VA}"); A(f"v_add_u32 v{gen.V_VA}, 12288, v{gen.V_VA}")
    A(f"v_add_u32 v{gen.V_VB}, {2*TILE}, v{gen.V_VA}")
def set_off(A, off, st, ptw=None):
    A(f"s_mul_i32 s{off.o768}, s{st}, {32*768}")
    if off.o768b is not None: A(f"s_add_u32 s{off.o768b}, s{off.o768}, {16*768}")
    A(f"s_mul_i32 s{off.o384}, s{st}, 384")
    if off.o64 is not None: A(f"s_lshl_b32 s{off.o64}, s{st}, 6")
def k_loads(i, R, off):
    return [I(f"buffer_load_dwordx4 {vr(R)}, v{KLD}, {sr(S_QK)}, s{off.o768} offen offset:{128*i}{LDK}"),
            I(f"buffer_load_dwordx4 {vr(R+4)}, v{KLD}, {sr(S_QK)}, s{off.o768} offen offset:{128*i+16}{LDK}"),
            I(f"buffer_load_dwordx4 {vr(R+8)}, v{KSC}, {sr(S_KZ)}, s{off.o384} offen offset:{64*i}"),
            I(f"buffer_load_dwordx4 {vr(R+12)}, v{KSC}, {sr(S_KS)}, s{off.o384} offen offset:{64*i}")]
def k_comp(R, T):
    c = []
    for p in range(4):
        a, b = R + 2 * p, R + 2 * p + 1; z = R + 8 + p; s = R + 12 + p
        c += [f"v_cvt_f32_i32 v{a}, v{a}", f"v_cvt_f32_i32 v{b}, v{b}",
              f"v_lshlrev_b32 v{T}, 16, v{z}", f"v_and_b32 v{T+1}, s{S_MASK}, v{z}",
              rnd(a, a), rnd(b, b),
              f"v_lshlrev_b32 v{T+2}, 16, v{s}", f"v_and_b32 v{T+3}, s{S_MASK}, v{s}",
              f"v_pk_add_f32 {vr(a,2)}, {vr(a,2)}, {vr(T,2)} neg_lo:[0,1] neg_hi:[0,1]",
              f"v_pk_mul_f32 {vr(T+2,2)}, {vr(T+2,2)}, {sr(S_C,2)}",
              rnd(a, a), rnd(b, b),
              f"v_pk_mul_f32 {vr(a,2)}, {vr(a,2)}, {vr(T+2,2)}",
              f"v_cvt_pk_bf16_f32 v{z}, v{a}, v{b}"]
    return [I(x) for x in c]
def k_store(i, R, ptw, glob=True, slot=None):
    o = []
    if glob: o.append(I(f"buffer_store_dwordx4 {vr(R+8)}, v{V_D0}, {sr(S_WS)}, s{ptw} offen offset:{1024*i}{ST}", tag="pst"))
    if slot is not None: o.append(I(f"ds_write_b128 v{V_D0}, {vr(R+8)} offset:{slot*TILE+1024*i}", tag="pds"))
    return o
def v_loads(R, Z, off):
    ld = [I(f"buffer_load_short_d16_hi v{Z}, v{VSC}, {sr(S_VZ)}, s{off.o64} offen"),
          I(f"buffer_load_short_d16_hi v{Z+1}, v{VSC}, {sr(S_VS)}, s{off.o64} offen")]
    for t in range(8):
        ld.append(I(f"buffer_load_dwordx3 {vr(R+4*t,3)}, v{VLD}, {sr(S_QV)}, s{off.o768 if t < 4 else off.o768b} offen offset:{768*(t%4)}{LDV}"))
    return ld
def v_comp(R, X, Z):
    c = []
    for t in range(8): c.append(f"v_readlane_b32 s{S_VZS+t}, v{Z}, {t}")
    for t in range(8): c.append(f"v_readlane_b32 s{S_VSS+t}, v{Z+1}, {t}")
    out = [R, R + 4, X]
    for u in range(4):
        g = R + 8 * u
        c += [f"v_cvt_f32_i32 v{g+7}, v{g+6}", f"v_cvt_f32_i32 v{g+6}, v{g+2}", f"v_cvt_f32_i32 v{g+2}, v{g+1}",
              f"v_cvt_f32_i32 v{g+3}, v{g+5}", f"v_cvt_f32_i32 v{g+1}, v{g+4}", f"v_cvt_f32_i32 v{g}, v{g}"]
        pr = [g, g + 2, g + 6]
        if not VINT:
          for p in (pr[2], pr[1], pr[0]): c += [rnd(p, p), rnd(p + 1, p + 1)]
          for p in (pr[2], pr[1], pr[0]): c.append(f"v_pk_add_f32 {vr(p,2)}, {vr(p,2)}, {sr(S_VZS+2*u,2)} neg_lo:[0,1] neg_hi:[0,1]")
          for p in (pr[2], pr[1], pr[0]): c += [rnd(p, p), rnd(p + 1, p + 1)]
          for p in (pr[2], pr[1], pr[0]): c.append(f"v_pk_mul_f32 {vr(p,2)}, {vr(p,2)}, {sr(S_VSS+2*u,2)}")
        elif VINT == 2:
          for p in (pr[2], pr[1], pr[0]): c.append(f"v_pk_add_f32 {vr(p,2)}, {vr(p,2)}, 4.0 op_sel_hi:[1,0] neg_lo:[0,1] neg_hi:[0,1]")
        for j in (2, 1, 0): c.append(f"v_cvt_pk_bf16_f32 v{out[j]+u}, v{pr[j]}, v{pr[j]+1}")
    return [I(x) for x in c]
def v_store(R, X, ptw, glob=True, slot=None):
    out = [R, R + 4, X]; o = []
    for j in range(3):
        if glob: o.append(I(f"buffer_store_dwordx4 {vr(out[j])}, v{V_D1}, {sr(S_WS)}, s{ptw} offen offset:{1024*j}{ST}", tag="pst"))
        if slot is not None: o.append(I(f"ds_write_b128 v{V_D1}, {vr(out[j])} offset:{slot*TILE+1024*j}", tag="pds"))
    return o
DMAF = " sc1"
def dma_group(slot):
    out = [I(f"s_add_u32 m0, s{S_W3072}, {slot*TILE}")]
    for k in range(3): out.append(I(f"buffer_load_dwordx4 v{V_D0}, {sr(S_WS)}, s{S_DMA} offen offset:{1024*k}{DMAF} lds", tag=f"dma{slot}"))
    out.append(I(f"s_add_u32 m0, s{S_W3072}, {slot*TILE+12288}"))
    for k in range(3): out.append(I(f"buffer_load_dwordx4 v{V_D1}, {sr(S_WS)}, s{S_DMA} offen offset:{1024*k}{DMAF} lds", tag=f"dma{slot}"))
    return out
def poll(dst=V_POLL, so=S_FLO): return I(f"buffer_load_dwordx2 {vr(dst,2)}, v{V_AT}, {sr(S_WS)}, s{so} offen sc1")
def post():
    return [I(f"v_mov_b32 v{V_T}, s{S_NON}"), I(f"v_mov_b32 v{V_T+1}, s{S_NON+1}"),
            I(f"buffer_store_dwordx2 {vr(V_T,2)}, v{V_AT}, {sr(S_WS)}, s{S_PFL} offen sc1", waits=["pst"]),
            I(f"s_add_u32 s{S_PFL}, s{S_PFL}, {8*512}")]
def cmpflag(src=V_POLL): return I(f"v_cmp_eq_u64 vcc, {sr(S_NON,2)}, {vr(src,2)}")
SITES = []
def check_site():
    n = len(SITES); SITES.append(n)
    return [I(f"s_cbranch_vccz L_slow{n}"), I(f"L_ret{n}:")]
def next_tile():
    return [I(f"s_mul_i32 s{S_DMA}, s{S_TN}, {TILE}"), I(f"s_mov_b32 s{S_T}, s{S_TN}"), I(f"s_add_u32 s{S_C4}, s{S_C4}, 1"), I(f"s_xor_b32 s{S_TN}, s{S_C4}, s{S_J}"),
            I(f"s_and_b32 s{S_TN}, s{S_TN}, 63"), I(f"s_lshl_b32 s{S_FLO}, s{S_TN}, 9")]
def softmax_gaps(gaps, qb, g0):
    s0, s1, p = Sreg(qb, 0), Sreg(qb, 1), Preg(qb)
    for r in range(4): gaps[g0 + 1 + r].append(I(f"v_exp_f32 v{s0+r}, v{s0+r}"))
    gaps[g0 + 5] += [I(f"v_cvt_pk_bf16_f32 v{p}, v{s0}, v{s0+1}"), I(f"v_cvt_pk_bf16_f32 v{p+1}, v{s0+2}, v{s0+3}")]
    for r in range(4): gaps[g0 + 6 + r].append(I(f"v_exp_f32 v{s1+r}, v{s1+r}"))
    gaps[g0 + 10] += [I(f"v_cvt_pk_bf16_f32 v{p+2}, v{s1}, v{s1+1}"), I(f"v_cvt_pk_bf16_f32 v{p+3}, v{s1+2}, v{s1+3}")]
BG = 59
def iter_parts(slot, do_post=False, do_poll=True, chk=True):
    M = []
    for qb in range(4):
        for tb in range(2):
            for s in range(6):
                S = vr(Sreg(qb, tb))
                M.append(mf(S, Kreg(tb, s), Qreg(qb, s), vr(V_NM + 4 * qb) if s == 0 else S))
    def pv(db, qb): o = ar(Oreg(db, qb)); return mf(o, vr(V_V + 4 * (db % 6)), vr(Preg(qb)), o)
    def on(qb): o = ar(Lreg(qb)); return mf(o, vr(V_ONES), vr(Preg(qb)), o)
    for db in range(4):
        for qb in range(3): M.append(pv(db, qb))
    for qb in range(3): M.append(on(qb))
    for db in range(4): M.append(pv(db, 3))
    M.append(on(3))
    for db in range(4, 12):
        for qb in range(4): M.append(pv(db, qb))
    gaps = [[] for _ in range(100)]
    for qb in range(4): softmax_gaps(gaps, qb, 12 * qb + 11)
    for db in range(6): gaps[1 + 2 * db].append(v_read(slot, db))
    nslot = (slot + 1) % 4
    nt = next_tile()
    gaps[48] += nt[0:2]; gaps[49] += nt[2:4]; gaps[50] += nt[4:6]
    if chk: gaps[57].append(cmpflag())
    gaps[BG] += [I("s_barrier", waits=[f"dma{nslot}"] + (["pst"] if (do_post or not chk) else []))]
    gaps[BG + 1] += (check_site() if chk else []) + ([*post()] if do_post else []) + ([poll()] if do_poll else [])
    dg = dma_group((slot + 3) % 4)
    for ins, p in zip(dg, [61, 61, 62, 63, 67, 68, 69, 70]): gaps[p].append(ins)
    for db, p in {6: 64, 7: 65, 8: 66, 9: 67, 10: 72, 11: 76}.items(): gaps[p].append(v_read(slot, db))
    for f, p in enumerate([71, 73, 74, 75, 77, 79, 81, 83, 85, 87, 89, 91]): gaps[p].append(k_read(nslot, f))
    return M, gaps
def cost(ins): return 0 if ins.kind == "label" else (2 if ins.kind == "trans" else 1)
def place(stream, gl, start, end, cap=2):
    slots = []
    for x in range(start, end):
        g = gl[x // 100][x % 100]
        if x % 100 in (BG, BG + 1): continue
        slots += [x] * max(0, cap - sum(cost(i) for i in g))
    if len(slots) < len(stream): return place(stream, gl, start, end, cap + 1)
    for k, ins in enumerate(stream):
        x = slots[(k * len(slots)) // len(stream)]
        gl[x // 100][x % 100].append(ins)
def sg_adv():
    return [I(f"s_mov_b32 s{S_C768}, s{S_N768}"), I(f"s_mov_b32 s{S_C384}, s{S_N384}"),
            I(f"s_add_u32 s{S_N768}, s{S_N768}, {8*TILE}"), I(f"s_add_u32 s{S_N768B}, s{S_N768B}, {8*TILE}"),
            I(f"s_add_u32 s{S_N384}, s{S_N384}, {8*384}"), I(f"s_add_u32 s{S_N64}, s{S_N64}, 512")]
def prod_stream():
    A_, B_ = V_KA_, V_KB_
    s = []
    s += k_comp(B_, V_T) + k_store(1, B_, S_PTW) + k_loads(1, B_, NEXT)
    s += k_comp(A_, V_T) + k_store(0, A_, S_PTW) + k_loads(2, A_, CUR)
    s += v_comp(V_VB, V_T, V_Z) + v_store(V_VB, V_T, S_PTW) + v_loads(V_VB, V_Z, NEXT)
    s += k_comp(A_, V_T) + k_store(2, A_, S_PTW) + k_loads(0, A_, NEXT)
    s += sg_adv()
    return s
def first_streams():
    A_, B_ = V_KA_, V_KB_
    ld = k_loads(0, A_, NEXT) + k_loads(1, B_, NEXT) + v_loads(V_VB, V_Z, NEXT) + sg_adv()
    m = k_comp(A_, V_T) + k_store(0, A_, S_PTW) + k_loads(2, A_, CUR)
    m += k_comp(B_, V_T) + k_store(1, B_, S_PTW)
    m += v_comp(V_VB, V_T, V_Z) + v_store(V_VB, V_T, S_PTW)
    m += k_comp(A_, V_T) + k_store(2, A_, S_PTW)
    tl = k_loads(1, B_, NEXT) + k_loads(0, A_, NEXT) + v_loads(V_VB, V_Z, NEXT) + sg_adv()
    return ld, m, tl
def block(label, n, prod, cnt_reg):
    own = {8: (1,), 12: (5,), 4: ()}[n]
    pe = n - 8 + CFG["peB"] if prod else -1
    late = (CFG["late"],) if n == 12 else ()
    parts = [iter_parts(i % 4, do_post=(i == pe), do_poll=(i + 1 not in own and i not in late), chk=(i not in own)) for i in range(n)]
    gl = [p[1] for p in parts]
    for i in late: gl[i + 1][CFG["lateg"]].append(poll())
    if n == 12:
        ld, m, tl = first_streams()
        pg = CFG["pg"]
        gl[pg // 100][pg % 100] += post()
        place(ld, gl, CFG["l0"], CFG["l1"]); place(m, gl, CFG["m0"], CFG["m1"]); place(tl, gl, CFG["t0"], CFG["t1"])
        place(prod_stream(), gl, CFG["s0"], pe * 100 - CFG['pm'])
    elif prod: place(prod_stream(), gl, 0, pe * 100 - CFG['pm'])
    L = [I(".p2align 6"), I(f"{label}:")]
    for it, (M, gaps) in enumerate(parts):
        if n == 12: stamp(lambda t: L.append(I(t)), f"a{it}")
        for m, g in zip(M, gaps): L.append(m); L.extend(g)
    if n != 12: L += [I(f"s_sub_u32 s{cnt_reg}, s{cnt_reg}, 1"), I(f"s_cmp_lg_u32 s{cnt_reg}, 0"), I(f"s_cbranch_scc1 {label}")]
    return L
SPIN_LIMIT = 40
def wait_routine():
    L = []; A = lambda t, **k: L.append(I(t, **k))
    X = V_K
    for n in SITES: A(f"L_slow{n}:"); A(f"s_mov_b32 s{S_SITE}, {n}"); A("s_branch L_wait")
    A("L_wait:"); A("s_waitcnt vmcnt(0) lgkmcnt(0)"); A(f"s_mov_b32 s{S_SPIN}, {SPIN_LIMIT}")
    A("L_spin:")
    if gen.PROF: A(f"s_add_u32 s{gen.S_TS+7}, s{gen.S_TS+7}, 100")
    A(f"s_lshl_b32 s{S_TMP}, s{S_T}, 9")
    L.append(poll(X, S_TMP)); A("s_waitcnt vmcnt(0)")
    L.append(cmpflag(X)); A("s_nop 4"); A("s_cbranch_vccnz L_wret")
    A("s_sleep 4"); A(f"s_sub_u32 s{S_SPIN}, s{S_SPIN}, 1"); A(f"s_cmp_lg_u32 s{S_SPIN}, 0"); A("s_cbranch_scc1 L_spin")
    SV = Sreg(0, 1); T = Sreg(1, 1); Z = Sreg(2, 1)
    for i in range(16): A(f"v_writelane_b32 v{SV}, s{S_VZS+i}, {i}")
    E = Off(S_TMP + 2, S_TMP + 3, S_TMP + 4, S_TMP + 5)
    set_off(A, E, S_T)
    A(f"v_mov_b32 v{Z}, 0"); A(f"v_mov_b32 v{Z+1}, 0")
    for i in range(3): L.extend(k_loads(i, X + 16 * i, E))
    for i in range(3): L.extend(k_comp(X + 16 * i, T)); L.extend(k_store(i, X + 16 * i, E.o768))
    A("s_nop 1")
    L.extend(v_loads(X, Z, E)); L.extend(v_comp(X, T, Z)); L.extend(v_store(X, T, E.o768))
    for i in range(16): A(f"v_readlane_b32 s{S_VZS+i}, v{SV}, {i}")
    A("s_waitcnt vmcnt(0)")
    A("L_wret:"); A("s_nop 7")
    for n in SITES[:-1]: A(f"s_cmp_eq_u32 s{S_SITE}, {n}"); A(f"s_cbranch_scc1 L_ret{n}")
    A(f"s_branch L_ret{SITES[-1]}")
    return L

def interleave(main, extra, start=0, every=None):
    if not extra: return main
    n = len(main) - start
    out = main[:start]; k = 0
    for i, ins in enumerate(main[start:]):
        out.append(ins)
        while k < len(extra) and (k + 1) * n <= (i + 1) * len(extra) * 1.0 + 1e-9 if every is None else (k < len(extra) and i % every == every - 1 and not out[-1] is extra[k-1]):
            out.append(extra[k]); k += 1
            if every is not None: break
    out += extra[k:]
    return out
CFG = dict(tlb=1, ipf=1, nB=5, nC=3, peB=7, pm=5, q1=0.5, q2=1.5, q3=2.5, q4=4, q5=4, d2late=1, late=5, lateg=8, pg=540, l0=10, l1=200, m0=220, m1=480, t0=500, t1=600, s0=620)
def rowmax2(A, src, off):
    gen.V_P = V_V
    rowmax_to_negm(A, src, off)
def gen_coop():
    SITES.clear()
    P = []; A = lambda t, **k: P.append(I(t, **k))
    A("s_cmp_ge_u32 s2, 256"); A("s_cbranch_scc1 L_end")
    A(f"s_and_b32 s{S_H}, s2, 7"); A(f"s_lshr_b32 s{S_TMP}, s2, 6"); A(f"s_lshl_b32 s{S_TMP}, s{S_TMP}, 3"); A(f"s_add_u32 s{S_H}, s{S_H}, s{S_TMP}")
    A(f"s_bfe_u32 s{S_J}, s2, 0x30003")
    if CFG["ipf"]:
        A(f"s_getpc_b64 {sr(S_VZS,2)}"); A("L_pc:"); A(f"s_mov_b32 s{S_VZS+2}, L_codeend-L_pc"); A(f"s_mov_b32 s{S_VZS+3}, 0x00020000")
        A(f"s_bfe_u32 s{S_VZS+4}, s2, 0x50003"); A(f"s_lshl_b32 s{S_VZS+4}, s{S_VZS+4}, 12"); A("v_lshlrev_b32 v1, 4, v0")
        A(f"buffer_load_dwordx4 v[252:255], v1, {sr(S_VZS)}, s{S_VZS+4} offen")
    load_ptrs_and_srds(A, prod=True, attn=True)
    stamp(A, 0)
    if gen.PROF: A(f"s_mov_b32 s{gen.S_TS+7}, 0")
    A(f"s_memrealtime {sr(S_NON,2)}")
    A(f"s_mov_b32 s{S_WS+2}, {64<<20:#x}")
    if CFG["tlb"]:
        A(f"buffer_load_dword v248, off, {sr(S_Q)}, 0"); A(f"s_mul_i32 s{S_TMP}, s{S_J}, {TILE}"); A(f"buffer_load_dword v249, off, {sr(S_WS)}, s{S_TMP}")
        A(f"s_sub_u32 s{S_TMP}, 32, s{S_H}"); A(f"s_mul_i32 s{S_TMP}, s{S_TMP}, {HEADWS}"); A(f"buffer_load_dword v250, off, {sr(S_WS)}, s{S_TMP}")
        A(f"buffer_load_dword v251, off, {sr(S_OUT)}, 0")
    addr_setup(A)
    O0 = Off(S_TMP + 2, S_TMP + 3, S_TMP + 4, S_TMP + 5)
    O1 = NEXT
    set_off(A, O0, S_J)
    K0, VV0, T0, Z0 = 64, 112, 144, 148
    K1, VV1, T1, Z1 = 192, 150, V_T, V_Z
    NV = V_ONES
    for z in (Z0, Z0 + 1, Z1, Z1 + 1): A(f"v_mov_b32 v{z}, 0")
    for i in range(3): P.extend(k_loads(i, K0 + 16 * i, O0))
    P.extend(v_loads(VV0, Z0, O0))
    A(f"s_or_b32 s{S_NON}, s{S_NON}, 1"); A(f"s_lshl_b32 s{S_HOFF}, s{S_H}, 3")
    A(f"v_lshl_add_u32 v3, s{S_W}, 6, v0"); A(f"v_lshlrev_b32 v3, 12, v3")
    A(f"v_mov_b32 v{NV}, s{S_NON}"); A(f"v_mov_b32 v{NV+1}, s{S_NON+1}"); A(f"v_mov_b32 v{NV+2}, 0"); A(f"v_mov_b32 v{NV+3}, 0")
    if DPROF:
        A(f"s_lshl_b32 s{S_HOFF}, s{S_H}, 2"); A(f"s_add_u32 s{S_HOFF}, s{S_HOFF}, 128"); A(f"s_mov_b32 s{S_NON+1}, 0"); A(f"v_mov_b32 v{NV+1}, 0")
        A(f"buffer_atomic_cmpswap {vr(NV,2)}, v3, {sr(S_DBG)}, s{S_HOFF} offen sc0 sc1")
    else: A(f"buffer_atomic_cmpswap_x2 {vr(NV)}, v3, {sr(S_DBG)}, s{S_HOFF} offen sc0 sc1")
    A("v_and_b32 v1, 15, v0"); A("v_lshrrev_b32 v2, 4, v0"); QV = 152; A(f"v_mul_u32_u24 v{QV}, 384, v1"); A(f"v_lshl_add_u32 v{QV}, v2, 4, v{QV}")
    A(f"s_mul_i32 s{S_TMP+6}, s{S_W}, 24576")
    qpos = [0]
    def qissue(upto):
        n = int(round(upto * 6))
        while qpos[0] < n:
            qb, s_ = divmod(qpos[0], 6)
            if qb and s_ == 0: A(f"s_add_u32 s{S_TMP+6}, s{S_TMP+6}, 6144")
            A(f"buffer_load_dwordx4 {Qreg(qb,s_)}, v{QV}, {sr(S_Q)}, s{S_TMP+6} offen offset:{64*s_}{LDQ}")
            qpos[0] += 1
    qissue(CFG["q1"])
    A(f"s_mov_b32 s{S_C768}, s{O0.o768}")
    A(f"s_mov_b32 s{S_PASS}, 0"); A(f"s_lshl_b32 s{S_PFL}, s{S_J}, 9")
    A(f"s_sub_u32 s{S_TMP}, 32, s{S_H}"); A(f"s_mul_i32 s{S_TMP}, s{S_TMP}, {HEADWS}"); A(f"s_lshl_b32 s{S_TMP+1}, s{S_H}, 15"); A(f"s_add_u32 s{S_TMP}, s{S_TMP}, s{S_TMP+1}")
    A(f"s_lshl_b32 s{S_TMP+1}, s{S_W}, 7"); A(f"s_add_u32 s{S_TMP}, s{S_TMP}, s{S_TMP+1}")
    A(f"v_mov_b32 v2, s{S_TMP}"); A(f"v_bfrev_b32 v{V_AT}, 1"); A("v_cmp_eq_u32 vcc, 0, v0"); A(f"v_cndmask_b32 v{V_AT}, v{V_AT}, v2, vcc")
    stamp(A, 8)
    for i in range(3): P.extend(k_comp(K0 + 16 * i, T0) + k_store(i, K0 + 16 * i, S_C768, True, 0))
    P.extend(v_comp(VV0, T0, Z0) + v_store(VV0, T0, S_C768, True, 0))
    A(f"v_readfirstlane_b32 s{S_TMP}, v{NV}"); A(f"v_readfirstlane_b32 s{S_TMP+1}, v{NV+1}")
    A(f"s_cmp_eq_u64 {sr(S_TMP,2)}, 0"); A(f"s_cselect_b64 {sr(S_NON,2)}, {sr(S_NON,2)}, {sr(S_TMP,2)}")
    A(f"v_mov_b32 v{NV}, s{S_NON}"); A(f"v_mov_b32 v{NV+1}, s{S_NON+1}")
    A(f"s_lshl_b32 s{S_TMP}, s{S_W}, 3"); A(f"v_mov_b32 v{NV+2}, s{S_TMP}")
    A(f"v_add_u32 v{NV+2}, {VOTE+16}, v{NV+2}")
    A(f"ds_write_b64 v{NV+2}, {vr(NV,2)}", tag="pds")
    qissue(CFG["q2"])
    stamp(A, 9)
    A(f"v_mov_b32 v{NV+2}, {VOTE+16}")
    A("s_barrier", waits=["pds"])
    A(f"ds_read_b64 {vr(NV,2)}, v{NV+2}")
    for f in range(12): P.append(k_read(0, f))
    zero_acc(A)
    A(f"v_readfirstlane_b32 s{S_NON}, v{NV}"); A(f"v_readfirstlane_b32 s{S_NON+1}, v{NV+1}")
    P.extend(post())
    A("v_and_b32 v2, 3, v0"); A("v_cmp_eq_u32 vcc, 0, v2"); A(f"v_mov_b32 v2, 0x3f803f80")
    for r in range(4): A(f"v_cndmask_b32 v{V_ONES+r}, 0, v2, vcc")
    stamp(A, 10)
    qissue(CFG["q3"])
    PX = 144
    for x in (1, 2):
        A(f"s_xor_b32 s{S_T}, s{S_J}, {x}"); A(f"s_lshl_b32 s{S_TMP}, s{S_T}, 9"); P.append(poll(PX + 2 * (x - 1), S_TMP))
    qissue(CFG["q4"])
    for x in (1, 2):
        A(f"s_xor_b32 s{S_T}, s{S_J}, {x}")
        P.append(cmpflag(PX + 2 * (x - 1))); A(f"s_mul_i32 s{S_DMA}, s{S_T}, {TILE}"); A("s_waitcnt lgkmcnt(0)"); A("s_nop 3")
        n = len(SITES); SITES.append(n)
        A(f"s_cbranch_vccnz L_go{x}"); A(f"s_mov_b32 s{S_SITE}, {n}"); A("s_branch L_wait"); A(f"L_ret{n}:")
        for f in range(12): P.append(k_read(0, f))
        A("s_waitcnt lgkmcnt(0)")
        A(f"L_go{x}:")
        stamp(A, 10 + x)
        if x == 2 and CFG["d2late"]: D2 = dma_group(x)
        else: P.extend(dma_group(x))
        if x == 1: qissue(CFG["q5"])
    qissue(4)
    A(f"s_mov_b32 s{S_C4}, 3"); A(f"s_xor_b32 s{S_TN}, s{S_J}, 3"); A(f"s_lshl_b32 s{S_FLO}, s{S_TN}, 9"); P.append(poll())
    A(f"s_add_u32 s{S_TMP}, s{S_J}, 8"); set_off(A, NEXT, S_TMP)
    gen.V_P = V_V
    first_max(A)
    if CFG["d2late"]: P.extend(D2)
    stamp(A, 1)
    BA = block("L_loopA", 12, True, S_CNT)
    X1 = [I(f"s_mov_b32 s{S_CNT}, {CFG['nB']}")]; stamp(lambda t: X1.append(I(t)), 5)
    BB = block("L_loopB", 8, True, S_CNT)
    X2 = [I(f"s_mov_b32 s{S_CNT}, {CFG['nC']}")]; stamp(lambda t: X2.append(I(t)), 6)
    BC = block("L_loopC", 4, False, S_CNT)
    E = []; A = lambda t, **k: E.append(I(t, **k))
    stamp(A, 2)
    epilogue(A, CFG.get("ostf", ""))
    stamp(A, 3)
    if gen.PROF: A("s_waitcnt vmcnt(0)"); stamp(A, 4)
    if gen.PROF and not DPROF: stamps_out(A)
    if DPROF:
        A(f"v_lshl_add_u32 v2, s{S_W}, 6, v0"); A("v_lshlrev_b32 v2, 12, v2")
        for i in range(8):
            A(f"s_sub_u32 s{S_TMP}, s{gen.S_TS+i}, s{gen.S_TS}") if 0 < i < 7 else A(f"s_mov_b32 s{S_TMP}, s{gen.S_TS+i}") if i else A(f"s_mov_b32 s{S_TMP}, 0")
            A(f"v_mov_b32 v16, s{S_TMP}"); A(f"buffer_atomic_add v16, v2, {sr(S_DBG)}, 0 offen offset:{32+4*i} sc1")
            A(f"s_not_b32 s{S_TMP}, s{gen.S_TS}") if i == 0 else A(f"s_mov_b32 s{S_TMP}, s{gen.S_TS+i}")
            A(f"v_mov_b32 v17, s{S_TMP}"); A(f"buffer_atomic_umax v17, v2, {sr(S_DBG)}, 0 offen offset:{4*i} sc1"); A("s_nop 4")
    A(f"v_mov_b32 v{V_S+4}, {VOTE}")
    A("s_barrier", waits=["vote"])
    A(f"ds_read_b128 {vr(V_S)}, v{V_S+4}")
    A(f"v_or3_b32 v{V_S+4}, v{V_S}, v{V_S+1}, v{V_S+2}"); A(f"v_or_b32 v{V_S+4}, v{V_S+4}, v{V_S+3}"); A(f"v_readfirstlane_b32 s{S_TMP}, v{V_S+4}")
    A(f"s_cmp_lg_u32 s{S_PASS}, 0"); A("s_cbranch_scc1 L_end")
    A(f"s_cmp_eq_u32 s{S_TMP}, 0"); A("s_cbranch_scc1 L_end")
    A("s_waitcnt vmcnt(0) lgkmcnt(0)")
    G = []; A = lambda t, **k: G.append(I(t, **k))
    A(f"s_xor_b32 s{S_T}, s{S_J}, 1"); A(f"s_lshl_b32 s{S_TMP}, s{S_T}, 9"); G.append(poll(V_POLL, S_TMP)); G.append(cmpflag()); A("s_nop 4"); G.extend(check_site())
    A("s_barrier")
    gen.V_P = V_V + 4
    fallback_max(A)
    A(f"s_mov_b32 s{S_PASS}, 1")
    for t in range(3):
        A(f"s_xor_b32 s{S_T}, s{S_J}, {t}"); A(f"s_mul_i32 s{S_DMA}, s{S_T}, {TILE}"); G.extend(dma_group(t))
    zero_acc(A)
    A(f"s_mov_b32 s{S_C4}, 3"); A(f"s_xor_b32 s{S_TN}, s{S_J}, 3"); A(f"s_lshl_b32 s{S_FLO}, s{S_TN}, 9"); G.append(poll())
    A("s_waitcnt vmcnt(0)"); A("s_barrier")
    for f in range(12): G.append(k_read(0, f))
    A("s_waitcnt lgkmcnt(0)"); A(f"s_mov_b32 s{S_CNT}, 16"); A("s_nop 7"); A("s_branch L_loopC")
    W = wait_routine()
    Z = [I("L_end:"), I("s_endpgm"), I("L_codeend:")]
    n = finalize([("P", P), ("A", BA), ("x", X1), ("B", BB), ("B", BB), ("x", X2), ("C", BC), ("C", BC), ("E", E), ("G", G), ("C", BC), ("C", BC)],
                 [("P", P), ("A", BA), ("x", X1), ("B", BB), ("x", X2), ("C", BC), ("E", E)],
                 [("W", W)])
    print("nops", n, "sizes", len(P), len(BA), len(BB), len(BC), len(E), len(G), len(W), file=sys.stderr)
    return "".join(text(x) for x in (P, BA, X1, BB, X2, BC, E, G, W, Z))
def file_coop():
    s = HDR + f"; @launch grid=(256,1,1) block=(256,1,1) lds={VOTE+64}\n"
    s += '.amdgcn_target "amdgcn-amd-amdhsa--gfx950"\n.text\n'
    s += khead(NAME + "_kernel") + gen_coop()
    s += '.section .rodata,"a"\n.p2align 6\n' + kd(NAME + "_kernel")
    return s
if __name__ == "__main__":
    gen.PROF = 4 if "prof4" in sys.argv else 3 if "prof3" in sys.argv else 2 if "prof2" in sys.argv else ("prof" in sys.argv)
    if "cyc" in sys.argv: gen.CLK = "s_memtime"
    for a in sys.argv[2:]:
        if "=" in a:
            k, v = a.split("=")
            if k == "STM": gen.STM = eval(v)
            elif k in globals(): globals()[k] = eval(v)
            else: CFG[k] = eval(v)
    open(sys.argv[1], "w").write(file_coop())
```

```python
import sys, re
sys.path.insert(0, "dev")
import gen
from gen import *
gen.V_P = None
def Preg(qb): return V_S + 8 * qb
V_AT = 1; V_POLL = 2
V_Z = 10
V_PA = 184; V_T = 188; V_VB = 192; V_KA_ = 224; V_KB_ = 240
S_C3 = 3; S_W3072 = 37; S_J = gen.S_J; S_CNT = 41
S_N768 = 45; S_N384 = 46; S_N64 = 47; S_N768B = 49
S_PASS = 57; gen.S_PROF = 58
S_HOFF = 76; S_C768 = 77; S_C384 = 78; S_PTW = S_C768; S_T = 79
S_NON = 88; S_FLO = 90; S_PFL = 91; S_SITE = 100; S_SPIN = 101
S_C4 = S_C3; S_TN = 48
FLAGB = 32 * HEADWS
ST = " sc1"
VINT = 0
DPROF = 0
LDK = LDV = LDQ = " sc0 sc1 nt"
class Off:
    def __init__(s, o768, o768b, o384, o64): s.o768, s.o768b, s.o384, s.o64 = o768, o768b, o384, o64
NEXT = Off(S_N768, S_N768B, S_N384, S_N64); CUR = Off(S_C768, None, S_C384, None)
KLD, KSC, VLD, VSC = V_PA, V_PA + 1, V_PA + 2, V_PA + 3
HT = TILE // 2; V_VA = 5; PP = [2, 6]; DM = [S_DMA, S_TN]; S_J9 = S_HOFF
def k_read(slot, f): return I(f"ds_read_b128 {vr(V_K+4*f)}, v{V_KA} offset:{slot*HT + f*1024}")
def v_read(slot, db): return I(f"ds_read_b128 {vr(V_V+4*(db%6))}, v{V_VA} offset:{slot*HT + db*256}")
def addr_setup(A):
    A(f"s_mul_i32 s{S_W3072}, s{S_W}, 3072")
    A(f"v_lshlrev_b32 v{V_KA}, 4, v0")
    A("v_and_b32 v1, 15, v0"); A("v_lshrrev_b32 v2, 4, v0")
    A(f"v_mul_u32_u24 v{KLD}, 768, v1"); A(f"v_lshl_add_u32 v{KLD}, v2, 5, v{KLD}")
    A(f"v_lshlrev_b32 v{KSC}, 4, v2")
    A(f"v_add_u32 v{V_D0}, s{S_W3072}, v{V_KA}"); A(f"v_add_u32 v{V_D1}, 12288, v{V_D0}")
    A(f"v_mul_u32_u24 v{VLD}, 12, v0"); A(f"v_add_u32 v{VLD}, s{S_W3072}, v{VLD}")
    A(f"s_lshr_b32 s{S_TMP}, s{S_W}, 1"); A(f"s_mul_i32 s{S_TMP}, s{S_TMP}, {16*768}")
    A(f"s_and_b32 s{S_TMP+1}, s{S_W}, 1"); A(f"s_mul_i32 s{S_TMP+2}, s{S_TMP+1}, 384"); A(f"s_add_u32 s{S_TMP}, s{S_TMP}, s{S_TMP+2}")
    A(f"v_add_u32 v{KLD}, s{S_TMP}, v{KLD}")
    A(f"s_mul_i32 s{S_TMP+2}, s{S_TMP+1}, 192"); A(f"v_add_u32 v{KSC}, s{S_TMP+2}, v{KSC}")
    A(f"v_and_b32 v3, 3, v0"); A(f"v_bfe_u32 v{VSC}, v0, 2, 1"); A(f"v_lshlrev_b32 v{VSC}, 5, v{VSC}"); A(f"v_lshl_add_u32 v{VSC}, v3, 1, v{VSC}")
    A(f"s_lshl_b32 s{S_TMP}, s{S_W}, 3"); A(f"v_add_u32 v{VSC}, s{S_TMP}, v{VSC}")
    A(f"v_mul_u32_u24 v{V_VA}, 3072, v2"); A(f"v_lshl_add_u32 v{V_VA}, v1, 4, v{V_VA}"); A(f"v_add_u32 v{V_VA}, {4*HT}, v{V_VA}")
def set_off(A, off, st, ptw=None):
    A(f"s_mul_i32 s{off.o768}, s{st}, {32*768}")
    if off.o768b is not None: A(f"s_add_u32 s{off.o768b}, s{off.o768}, {16*768}")
    A(f"s_mul_i32 s{off.o384}, s{st}, 384")
    if off.o64 is not None: A(f"s_lshl_b32 s{off.o64}, s{st}, 6")
def k_loads(i, R, off):
    return [I(f"buffer_load_dwordx4 {vr(R)}, v{KLD}, {sr(S_QK)}, s{off.o768} offen offset:{128*i}{LDK}"),
            I(f"buffer_load_dwordx4 {vr(R+4)}, v{KLD}, {sr(S_QK)}, s{off.o768} offen offset:{128*i+16}{LDK}"),
            I(f"buffer_load_dwordx4 {vr(R+8)}, v{KSC}, {sr(S_KZ)}, s{off.o384} offen offset:{64*i}"),
            I(f"buffer_load_dwordx4 {vr(R+12)}, v{KSC}, {sr(S_KS)}, s{off.o384} offen offset:{64*i}")]
def unpk(L):
    o = []
    for i in L:
        m = re.match(r"v_pk_(add|mul)_f32 v\[(\d+):\d+\], v\[(\d+):\d+\], ([vs])\[(\d+):\d+\]", i.text)
        if not m: o.append(i); continue
        d, a, k, b = int(m.group(2)), int(m.group(3)), m.group(4), int(m.group(5))
        op = "v_subrev_f32" if m.group(1) == "add" else "v_mul_f32"
        o += [I(f"{op} v{d+h}, {k}{b+h}, v{a+h}") for h in range(2)]
    return o
def k_comp(R, T):
    c = []
    if CFG["kpipe"]:
        A_ = lambda p: R + 2 * p
        cv = lambda r: f"v_cvt_f32_i32 v{r}, v{r}"
        zl = lambda p: f"v_lshlrev_b32 v{T}, 16, v{R+8+p}"
        zh = lambda p: f"v_and_b32 v{T+1}, s{S_MASK}, v{R+8+p}"
        c += [cv(R), cv(R + 1), zl(0), rnd(R, R), zh(0), rnd(R + 1, R + 1)]
        for p in range(4):
            a = A_(p); b = a + 1; z = R + 8 + p; s = R + 12 + p; n = p < 3; a2 = a + 2; b2 = a + 3
            c += [f"v_lshlrev_b32 v{T+2}, 16, v{s}", f"v_and_b32 v{T+3}, s{S_MASK}, v{s}",
                  f"v_pk_add_f32 {vr(a,2)}, {vr(a,2)}, {vr(T,2)} neg_lo:[0,1] neg_hi:[0,1]"] + ([cv(a2)] if n else []) + \
                 [f"v_pk_mul_f32 {vr(T+2,2)}, {vr(T+2,2)}, {sr(S_C,2)}"] + ([cv(b2)] if n else []) + [rnd(a, a)] + ([zl(p+1)] if n else []) + \
                 [rnd(b, b)] + ([zh(p+1)] if n else []) + [f"v_pk_mul_f32 {vr(a,2)}, {vr(a,2)}, {vr(T+2,2)}"] + ([rnd(a2, a2), rnd(b2, b2)] if n else []) + \
                 [f"v_cvt_pk_bf16_f32 v{z}, v{a}, v{b}"]
        return [I(x) for x in c]
    for p in range(4):
        a, b = R + 2 * p, R + 2 * p + 1; z = R + 8 + p; s = R + 12 + p
        c += [f"v_cvt_f32_i32 v{a}, v{a}", f"v_cvt_f32_i32 v{b}, v{b}",
              f"v_lshlrev_b32 v{T}, 16, v{z}", f"v_and_b32 v{T+1}, s{S_MASK}, v{z}",
              rnd(a, a), rnd(b, b),
              f"v_lshlrev_b32 v{T+2}, 16, v{s}", f"v_and_b32 v{T+3}, s{S_MASK}, v{s}",
              f"v_pk_add_f32 {vr(a,2)}, {vr(a,2)}, {vr(T,2)} neg_lo:[0,1] neg_hi:[0,1]",
              f"v_pk_mul_f32 {vr(T+2,2)}, {vr(T+2,2)}, {sr(S_C,2)}",
              rnd(a, a), rnd(b, b),
              f"v_pk_mul_f32 {vr(a,2)}, {vr(a,2)}, {vr(T+2,2)}",
              f"v_cvt_pk_bf16_f32 v{z}, v{a}, v{b}"]
    return [I(x) for x in c]
def k_store(i, R, ptw, glob=True, slot=None):
    o = []
    if glob: o.append(I(f"buffer_store_dwordx4 {vr(R+8)}, v{V_D0}, {sr(S_WS)}, s{ptw} offen offset:{1024*i}{ST}", tag="pst"))
    if slot is not None: o.append(I(f"ds_write_b128 v{V_D0}, {vr(R+8)} offset:{slot*HT+1024*i}", tag="pds"))
    return o
def v_loads(R, Z, off):
    ld = [I(f"buffer_load_short_d16_hi v{Z}, v{VSC}, {sr(S_VZ)}, s{off.o64} offen"),
          I(f"buffer_load_short_d16_hi v{Z+1}, v{VSC}, {sr(S_VS)}, s{off.o64} offen")]
    for t in range(8):
        ld.append(I(f"buffer_load_dwordx3 {vr(R+4*t,3)}, v{VLD}, {sr(S_QV)}, s{off.o768 if t < 4 else off.o768b} offen offset:{768*(t%4)}{LDV}"))
    return ld
def v_comp(R, X, Z):
    c = []
    for t in range(8): c.append(f"v_readlane_b32 s{S_VZS+t}, v{Z}, {t}")
    for t in range(8): c.append(f"v_readlane_b32 s{S_VSS+t}, v{Z+1}, {t}")
    out = [R, R + 4, X]
    for u in range(4):
        g = R + 8 * u
        c += [f"v_cvt_f32_i32 v{g+7}, v{g+6}", f"v_cvt_f32_i32 v{g+6}, v{g+2}", f"v_cvt_f32_i32 v{g+2}, v{g+1}",
              f"v_cvt_f32_i32 v{g+3}, v{g+5}", f"v_cvt_f32_i32 v{g+1}, v{g+4}", f"v_cvt_f32_i32 v{g}, v{g}"]
        pr = [g, g + 2, g + 6]
        if not VINT:
          for p in (pr[2], pr[1], pr[0]): c += [rnd(p, p), rnd(p + 1, p + 1)]
          for p in (pr[2], pr[1], pr[0]): c.append(f"v_pk_add_f32 {vr(p,2)}, {vr(p,2)}, {sr(S_VZS+2*u,2)} neg_lo:[0,1] neg_hi:[0,1]")
          for p in (pr[2], pr[1], pr[0]): c += [rnd(p, p), rnd(p + 1, p + 1)]
          for p in (pr[2], pr[1], pr[0]): c.append(f"v_pk_mul_f32 {vr(p,2)}, {vr(p,2)}, {sr(S_VSS+2*u,2)}")
        elif VINT == 2:
          for p in (pr[2], pr[1], pr[0]): c.append(f"v_pk_add_f32 {vr(p,2)}, {vr(p,2)}, 4.0 op_sel_hi:[1,0] neg_lo:[0,1] neg_hi:[0,1]")
        for j in (2, 1, 0): c.append(f"v_cvt_pk_bf16_f32 v{out[j]+u}, v{pr[j]}, v{pr[j]+1}")
    return [I(x) for x in c]
def v_store(R, X, ptw, glob=True, slot=None):
    out = [R, R + 4, X]; o = []
    for j in range(3):
        if glob: o.append(I(f"buffer_store_dwordx4 {vr(out[j])}, v{V_D1}, {sr(S_WS)}, s{ptw} offen offset:{1024*j}{ST}", tag="pst"))
        if slot is not None: o.append(I(f"ds_write_b128 v{V_D1}, {vr(out[j])} offset:{(3+slot)*HT+1024*j}", tag="pds"))
    return o
DMAF = " sc1"
def dma_group(slot, S_DMA=S_DMA):
    out = [I(f"s_add_u32 m0, s{S_W3072}, {slot*HT}")]
    for k in range(3): out.append(I(f"buffer_load_dwordx4 v{V_D0}, {sr(S_WS)}, s{S_DMA} offen offset:{1024*k}{DMAF} lds", tag=f"dma{slot}"))
    out.append(I(f"s_add_u32 m0, s{S_W3072}, {(4+slot)*HT}"))
    for k in range(3): out.append(I(f"buffer_load_dwordx4 v{V_D1}, {sr(S_WS)}, s{S_DMA} offen offset:{1024*k}{DMAF} lds", tag=f"dma{slot}"))
    return out
def poll(dst=V_POLL, so=S_FLO): return I(f"buffer_load_dwordx2 {vr(dst,2)}, v{V_AT}, {sr(S_WS)}, s{so} offen sc1")
def post(V_T=V_T):
    return [I(f"v_mov_b32 v{V_T}, s{S_NON}"), I(f"v_mov_b32 v{V_T+1}, s{S_NON+1}"),
            I(f"buffer_store_dwordx2 {vr(V_T,2)}, v{V_AT}, {sr(S_WS)}, s{S_PFL} offen sc1", waits=["pst"]),
            I(f"s_add_u32 s{S_PFL}, s{S_PFL}, {8*512}")]
def cmpflag(src=V_POLL): return I(f"v_cmp_eq_u64 vcc, {sr(S_NON,2)}, {vr(src,2)}")
SITES = []
LOOPS = set()
def check_site(loop=True):
    n = len(SITES); SITES.append(n)
    if loop: LOOPS.add(n)
    return [I(f"s_cbranch_vccz L_slow{n}"), I(f"L_ret{n}:")]
def next_tile():
    return [I(f"s_add_u32 s{S_C4}, s{S_C4}, 512"), I(f"s_xor_b32 s{S_FLO}, s{S_C4}, s{S_J9}"), I(f"s_and_b32 s{S_FLO}, s{S_FLO}, 0x7e00")]
def late_poll(i):
    return [I(f"s_xor_b32 s{S_TMP}, s{S_J9}, {(i+3)*512}"), poll(PP[i % 2], S_TMP)]
def pipe_init(A, L, second=True):
    for i in range(2): A(f"s_xor_b32 s{S_TMP}, s{S_J9}, {(i+3)*512}"); A(f"s_mul_i32 s{DM[i]}, s{S_TMP}, {TILE//512}")
    A(f"s_mov_b32 s{S_C4}, {4*512}")
def softmax_gaps(gaps, qb, g0):
    s0, s1, p = Sreg(qb, 0), Sreg(qb, 1), Preg(qb)
    for r in range(4): gaps[g0 + 1 + r].append(I(f"v_exp_f32 v{s0+r}, v{s0+r}"))
    gaps[g0 + 5] += [I(f"v_cvt_pk_bf16_f32 v{p}, v{s0}, v{s0+1}"), I(f"v_cvt_pk_bf16_f32 v{p+1}, v{s0+2}, v{s0+3}")]
    for r in range(4): gaps[g0 + 6 + r].append(I(f"v_exp_f32 v{s1+r}, v{s1+r}"))
    gaps[g0 + 10] += [I(f"v_cvt_pk_bf16_f32 v{p+2}, v{s1}, v{s1+1}"), I(f"v_cvt_pk_bf16_f32 v{p+3}, v{s1+2}, v{s1+3}")]
BG = 59
def iter_parts(slot, do_post=False, do_poll=True, chk=True, abl=''):
    M = []
    for qb in range(4):
        for tb in range(2):
            for s in range(6):
                S = vr(Sreg(qb, tb))
                M.append(mf(S, Kreg(tb, s), Qreg(qb, s), vr(V_NM + 4 * qb) if s == 0 else S))
    def pv(db, qb): o = ar(Oreg(db, qb)); return mf(o, vr(V_V + 4 * (db % 6)), vr(Preg(qb)), o)
    def on(qb): o = ar(Lreg(qb)); return mf(o, vr(V_ONES), vr(Preg(qb)), o)
    for db in range(4):
        for qb in range(3): M.append(pv(db, qb))
    for qb in range(3): M.append(on(qb))
    for db in range(4): M.append(pv(db, 3))
    M.append(on(3))
    for db in range(4, 12):
        for qb in range(4): M.append(pv(db, qb))
    gaps = [[] for _ in range(100)]
    for qb in range(4): softmax_gaps(gaps, qb, 12 * qb + 11)
    def tg(i, t): i.tag = t; return i
    for db in range(6): gaps[CFG["vr0"][db]].append(tg(v_read(slot, db), f"v{db}"))
    for m, tags in CFG["mw"].items(): M[m].waits = tuple(tags)
    nslot = (slot + 1) % 4
    nt = next_tile()
    for ins, p in zip(nt, CFG["ntp"]): gaps[p].append(ins)
    if chk: gaps[CFG["cfp"]].append(cmpflag(PP[slot % 2]))
    gaps[BG] += [I("s_barrier", waits=[f"dma{nslot}"] + (["pst"] if do_post else []))]
    gaps[BG + 1] += (check_site() if chk else []) + ([*post()] if do_post else []) + ([poll(PP[slot % 2])] if do_poll else [])
    dg = dma_group((slot + 3) % 4, DM[slot % 2])
    gaps[CFG['dmp']].append(I(f"s_mul_i32 s{DM[slot % 2]}, s{S_FLO}, {TILE//512}"))
    for ins, p in zip(dg, CFG['dmap']): gaps[p].append(ins)
    for db, p in zip(range(6, 12), CFG['vrp']): gaps[p].append(tg(v_read(slot, db), f'v{db}'))
    for f, p in enumerate(CFG['krp']): gaps[p].append(tg(k_read(nslot, f), f'k{f}'))
    if abl:
        def keep(i):
            t = i.text if hasattr(i, 'text') else str(i)
            if 'b' in abl and 's_barrier' in t: return False
            if 'd' in abl and (' lds' in t or 'm0' in t): return False
            if 'k' in abl and 'ds_read' in t and int(re.search(r'v\[(\d+)', t).group(1)) < V_V: return False
            if 'v' in abl and 'ds_read' in t and int(re.search(r'v\[(\d+)', t).group(1)) >= V_V: return False
            if 'e' in abl and 'v_exp' in t: return False
            if 'c' in abl and 'v_cvt_pk' in t: return False
            if 'p' in abl and ('v_cmp_eq_u64' in t or 'vccz' in t or 'buffer_load_dwordx2' in t): return False
            if 's' in abl and t.startswith('s_') and 'barrier' not in t and 'm0' not in t and 'vccz' not in t: return False
            return True
        gaps = [[i for i in g if keep(i)] for g in gaps]
    return M, gaps
def cost(ins):
    if ins.kind == "label": return 0
    if ins.kind == "trans": return 2
    if ins.kind in ("dma", "vload", "vstore"): return CFG.get("cvm", 1)
    if ins.kind == "lds": return CFG.get("clds", 1)
    return 1
def place(stream, gl, start, end, cap=2):
    if CFG["unpk"]: stream = unpk(stream)
    slots = []
    for x in range(start, end):
        g = gl[x // 100][x % 100]
        if x % 100 in (BG, BG + 1): continue
        fr = max(0, cap - sum(cost(i) for i in g))
        if CFG["pmode"] == 1 and cap == 2: fr = min(fr, 1)
        slots += [x] * fr
    if len(slots) < len(stream): return place(stream, gl, start, end, cap + 1)
    wt = [(CFG["pkw"] if "v_pk_" in i.text else 1) for i in stream]; tot = sum(wt); acc = 0
    for k, ins in enumerate(stream):
        x = slots[int(acc * len(slots) // tot)]; acc += wt[k]
        gl[x // 100][x % 100].append(ins)
def sg_adv():
    return [I(f"s_mov_b32 s{S_C768}, s{S_N768}"), I(f"s_mov_b32 s{S_C384}, s{S_N384}"),
            I(f"s_add_u32 s{S_N768}, s{S_N768}, {8*TILE}"), I(f"s_add_u32 s{S_N768B}, s{S_N768B}, {8*TILE}"),
            I(f"s_add_u32 s{S_N384}, s{S_N384}, {8*384}"), I(f"s_add_u32 s{S_N64}, s{S_N64}, 512")]
def mix(main, extra, step):
    out = []; e = list(extra)
    for k, ins in enumerate(main):
        out.append(ins)
        if e and k % step == step - 1: out.append(e.pop(0))
    return out + e
def prod_tail(): return k_loads(0, V_KA_, NEXT) + sg_adv()
def prod_stream():
    A_, B_ = V_KA_, V_KB_
    st = CFG["mixs"]
    s = []
    s += k_comp(B_, V_T) + k_store(1, B_, S_PTW)
    s += mix(k_comp(A_, V_T), k_loads(1, B_, NEXT), st) + k_store(0, A_, S_PTW)
    vs = v_store(V_VB, V_T, S_PTW)
    s += mix(v_comp(V_VB, V_T, V_Z), k_loads(2, A_, CUR), st) + vs[2:]
    s += mix(k_comp(A_, V_T), vs[:2] + v_loads(V_VB, V_Z, NEXT), 4) + k_store(2, A_, S_PTW)
    pa = CFG.get("pabl", "")
    if 'P' in pa: s = [i for i in s if i.kind not in ("valu",)]
    if 'R' in pa: s = [i for i in s if "readlane" not in i.text]
    if 'Q' in pa: s = [i for i in s if "v_pk_" not in i.text]
    if 'L' in pa: s = [i for i in s if i.kind != "vload"]
    if 'W' in pa:
        for i in s:
            if i.kind == "vload": i.wr = []
    if 'Z' in pa: s = [i for i in s if not (i.kind == "vload" and "nt" not in i.text)]
    if 'K' in pa: s = [i for i in s if not (i.kind == "vload" and "x4" in i.text and "nt" in i.text)]
    if 'V' in pa: s = [i for i in s if not (i.kind == "vload" and "x3" in i.text)]
    if 'S' in pa: s = [i for i in s if i.kind != "vstore"]
    return s
def first_streams():
    A_, B_ = V_KA_, V_KB_
    ld = k_loads(0, A_, NEXT) + k_loads(1, B_, NEXT) + v_loads(V_VB, V_Z, NEXT) + sg_adv()
    m = k_comp(A_, V_T) + k_store(0, A_, S_PTW)
    m += mix(k_comp(B_, V_T), k_loads(2, A_, CUR), CFG["mixs"]) + k_store(1, B_, S_PTW)
    vs = v_store(V_VB, V_T, S_PTW)
    m += v_comp(V_VB, V_T, V_Z) + vs[2:]
    m += mix(k_comp(A_, V_T), vs[:2], 6) + k_store(2, A_, S_PTW)
    tl = k_loads(1, B_, NEXT) + k_loads(0, A_, NEXT) + v_loads(V_VB, V_Z, NEXT) + sg_adv()
    return ld, m, tl
def block(label, n, prod, cnt_reg):
    own = {8: (1,), 12: (5,), 4: ()}[n]
    pe = n - 8 + CFG["peB"] if prod else -1
    late = CFG["late"] if n == 12 else {}
    parts = [iter_parts(i % 4, do_post=(i == pe), do_poll=((i + 2) % n not in own or n == 12 and i + 2 >= n) and i + 2 not in late and not (n == 12 and i == 11), chk=(i not in own), abl=(CFG.get('abl','') if n == 4 else '')) for i in range(n)]
    gl = [p[1] for p in parts]
    for i, x in late.items(): gl[x // 100][x % 100] += late_poll(i)
    def sched(i0, nv):
        A_, B_ = V_KA_, V_KB_
        def vm(it, ops):
            for ins, g in zip(ops, CFG["vw"]): x = (i0 + it) * 100 + g; gl[x // 100][x % 100].append(ins)
            assert len(ops) <= len(CFG["vw"])
        vs = v_store(V_VB, V_T, S_PTW); e = CFG["ve"]; o = i0 * 100
        vm(1, k_store(1, B_, S_PTW) + k_loads(1, B_, NEXT)); vm(2, k_store(0, A_, S_PTW) + k_loads(2, A_, CUR))
        vm(2 + nv, vs[2:] + vs[:2] + v_loads(V_VB, V_Z, NEXT)); vm(3 + nv, k_store(2, A_, S_PTW) + k_loads(0, A_, NEXT))
        place(k_comp(B_, V_T), gl, o + CFG["kb0"] * (n == 12), o + e); place(k_comp(A_, V_T), gl, o + 100, o + 100 + e); place(v_comp(V_VB, V_T, V_Z), gl, o + 200, o + 100 + 100 * nv + e)
        place(k_comp(A_, V_T), gl, o + 201 + 100 * nv, o + 200 + 100 * nv + e); place(sg_adv(), gl, o + 330 + 100 * nv, o + 400 + 100 * nv)
    if n == 12:
        ld, m, tl = first_streams()
        pg = CFG["pg"]
        gl[pg // 100][pg % 100] += post(PP[1])
        place(ld, gl, CFG["l0"], CFG["l1"]); place(m, gl, CFG["m0"], CFG["m1"]); place(tl, gl, CFG["t0"], CFG["t1"])
        sched(CFG["sa"], 2)
    elif prod: sched(0, CFG["nv"])
    if n == 4 and CFG.get("dummy"):
        place([I(CFG["dummy"].replace("D", str(192 + 2 * (k % 8))).replace("E", str(193 + 2 * (k % 8)))) for k in range(4 * CFG.get("dn", 40))], gl, 0, 400)
    L = [I(".p2align 6"), I(f"{label}:")]
    for it, (M, gaps) in enumerate(parts):
        if n == 12: stamp(lambda t: L.append(I(t)), f"a{it}")
        if n == 8: stamp(lambda t: L.append(I(t)), f"b{it}")
        for m, g in zip(M, gaps): L.append(m); L.extend(g)
    if n != 12: L += [I(f"s_sub_u32 s{cnt_reg}, s{cnt_reg}, 1"), I(f"s_cmp_lg_u32 s{cnt_reg}, 0"), I(f"s_cbranch_scc1 {label}")]
    return L
SPIN_LIMIT = 40
def wait_routine():
    L = []; A = lambda t, **k: L.append(I(t, **k))
    X = V_K
    for n in SITES:
        A(f"L_slow{n}:"); A(f"s_mov_b32 s{S_SITE}, {n}"); A("s_branch L_waitl" if n in LOOPS else "s_branch L_wait")
    A("L_waitl:"); A(f"s_sub_u32 s{S_T}, s{S_C4}, 1024"); A(f"s_xor_b32 s{S_T}, s{S_T}, s{S_J9}"); A(f"s_bfe_u32 s{S_T}, s{S_T}, 0x60009")
    A("L_wait:"); A("s_waitcnt vmcnt(0) lgkmcnt(0)"); A(f"s_mov_b32 s{S_SPIN}, {SPIN_LIMIT}")
    A("L_spin:")
    if gen.PROF: A(f"s_add_u32 s{gen.S_TS+7}, s{gen.S_TS+7}, 100")
    A(f"s_lshl_b32 s{S_TMP}, s{S_T}, 9")
    L.append(poll(X, S_TMP)); A("s_waitcnt vmcnt(0)")
    L.append(cmpflag(X)); A("s_nop 4"); A("s_cbranch_vccnz L_wret")
    A("s_sleep 4"); A(f"s_sub_u32 s{S_SPIN}, s{S_SPIN}, 1"); A(f"s_cmp_lg_u32 s{S_SPIN}, 0"); A("s_cbranch_scc1 L_spin")
    SV = Sreg(0, 1); T = Sreg(1, 1); Z = Sreg(2, 1)
    for i in range(16): A(f"v_writelane_b32 v{SV}, s{S_VZS+i}, {i}")
    E = Off(S_TMP + 2, S_TMP + 3, S_TMP + 4, S_TMP + 5)
    set_off(A, E, S_T)
    A(f"v_mov_b32 v{Z}, 0"); A(f"v_mov_b32 v{Z+1}, 0")
    for i in range(3): L.extend(k_loads(i, X + 16 * i, E))
    for i in range(3): L.extend(k_comp(X + 16 * i, T)); L.extend(k_store(i, X + 16 * i, E.o768))
    A("s_nop 1")
    L.extend(v_loads(X, Z, E)); L.extend(v_comp(X, T, Z)); L.extend(v_store(X, T, E.o768))
    for i in range(16): A(f"v_readlane_b32 s{S_VZS+i}, v{SV}, {i}")
    A("s_waitcnt vmcnt(0)")
    A("L_wret:"); A("s_nop 7")
    for n in SITES[:-1]: A(f"s_cmp_eq_u32 s{S_SITE}, {n}"); A(f"s_cbranch_scc1 L_ret{n}")
    A(f"s_branch L_ret{SITES[-1]}")
    return L

def interleave(main, extra, start=0, every=None):
    if not extra: return main
    n = len(main) - start
    out = main[:start]; k = 0
    for i, ins in enumerate(main[start:]):
        out.append(ins)
        while k < len(extra) and (k + 1) * n <= (i + 1) * len(extra) * 1.0 + 1e-9 if every is None else (k < len(extra) and i % every == every - 1 and not out[-1] is extra[k-1]):
            out.append(extra[k]); k += 1
            if every is not None: break
    out += extra[k:]
    return out
CFG = dict(epi2=1, estep=8, unpk=1, kpipe=0, pmode=0, pkw=1, sched=1, vw=[0,2,4,6,8,10,13,15,18,20,23,25,27], ve=98, vb=0, mixs=6, tl=50, mw={47:['v5'],80:['v9'],92:['v11'],0:['k5'],4:['k11']}, vr0=[1,3,5,7,9,11], ntp=[22,23,34], cfp=58, dmap=[58,62,70,78,80,86,92,98], vrp=[64,65,66,67,72,76], krp=[61,63,68,69,71,73,74,75,77,79,81,83], tlb=0, ipf=0, nB=5, nC=3, peB=7, pm=30, q1=0.5, q2=1.5, q3=2.5, q4=4, q5=4, d2late=1, late={1: 30, 6: 608, 7: 661}, dmp=99, pg=520, l0=0, l1=100, m0=130, m1=398, t0=400, t1=450, sa=5, nv=2, kb0=0)
def rowmax2(A, src, off):
    gen.V_P = V_V
    rowmax_to_negm(A, src, off)
STG = VOTE + 64; STW = 12800
def epilogue2(E, stflags=""):
    A = lambda t, **k: E.append(I(t, **k))
    RL = V_S
    for qb in range(4): A(f"v_accvgpr_read_b32 v{RL+4+qb}, a{Lreg(qb)}")
    for qb in range(4): A(f"v_rcp_f32 v{RL+qb}, v{RL+4+qb}")
    WA = RL + 12; RA = RL + 13
    A("v_and_b32 v3, 15, v0"); A("v_lshrrev_b32 v2, 4, v0"); A(f"v_mul_u32_u24 v3, 400, v3"); A("v_mul_u32_u24 v2, 24, v2")
    A(f"s_mul_i32 s{S_TMP+3}, s{S_W}, {STW}"); A(f"s_add_u32 s{S_TMP+3}, s{S_TMP+3}, {STG}"); A(f"v_add3_u32 v{WA}, v3, v2, s{S_TMP+3}")
    def comp(qb, e, t):
        c = []
        for r in range(4):
            for j in range(3): c.append(f"v_accvgpr_read_b32 v{t+3*r+j}, a{Oreg(4*j+e, qb)+r}")
        for p in range(6): c.append(f"v_pk_mul_f32 {vr(t+2*p,2)}, {vr(t+2*p,2)}, {vr(RL+(qb&~1),2)} op_sel:[0,{qb&1}] op_sel_hi:[1,{qb&1}]")
        for p in range(6): c.append(f"v_cvt_pk_bf16_f32 v{t+p}, v{t+2*p}, v{t+2*p+1}")
        for p in range(3): c.append(f"ds_write_b64 v{WA}, {vr(t+2*p,2)} offset:{(qb&1)*6400 + 96*e + 8*p}")
        return [I(x) for x in c]
    def half(h): return [i for k in range(8) for i in comp(2 * h + k // 4, k % 4, V_K + (k % 3) * 16)]
    RB = [V_VB, V_VB]
    def reads(h): return [I(f"ds_read_b128 {vr(RB[h]+4*i)}, v{RA+i%3} offset:{(i//3)*3200}") for i in range(12)]
    def stores(h):
        o = []
        for i in range(12):
            if i % 4 == 0: o.append(I(f"s_add_u32 s{S_TMP+2}, s{S_TMP+2}, 4096"))
            o.append(I(f"buffer_store_dwordx4 {vr(RB[h]+4*i)}, v{V_KA}, {sr(S_OUT)}, s{S_TMP+2} offen offset:{1024*(i%4)}{stflags}"))
        return o
    E.extend(half(0)[:27])
    for r in range(3):
        A(f"v_add_u32 v2, {64*r}, v0"); A(f"v_mul_u32_u24 v3, 2731, v2"); A("v_lshrrev_b32 v3, 16, v3"); A("v_add_u32 v2, v2, v3"); A(f"v_lshl_add_u32 v{RA+r}, v2, 4, s{S_TMP+3}")
    A(f"s_mul_i32 s{S_TMP+2}, s{S_W}, 24576"); A(f"s_sub_u32 s{S_TMP+2}, s{S_TMP+2}, 4096")
    E.extend(half(0)[27:]); E.extend(reads(0))
    A(f"v_max_f32 v{RL+8}, v{RL+4}, v{RL+5}"); A(f"v_max3_f32 v{RL+8}, v{RL+8}, v{RL+6}, v{RL+7}")
    A(f"v_add_f32 v{RL+9}, v{RL+4}, v{RL+5}"); A(f"v_add_f32 v{RL+10}, v{RL+6}, v{RL+7}"); A(f"v_add_f32 v{RL+9}, v{RL+9}, v{RL+10}")
    A(f"v_cmp_nge_f32 vcc, 1.0, v{RL+8}"); A(f"v_cmp_u_f32 {sr(S_TMP,2)}, v{RL+9}, v{RL+9}")
    A(f"s_or_b64 vcc, vcc, {sr(S_TMP,2)}"); A(f"s_or_b32 s{S_TMP}, vcc_lo, vcc_hi")
    A(f"v_mov_b32 v{RL+8}, s{S_TMP}"); A(f"s_lshl_b32 s{S_TMP+1}, s{S_W}, 2"); A(f"s_add_u32 s{S_TMP+1}, s{S_TMP+1}, {VOTE}"); A(f"v_mov_b32 v{RL+9}, s{S_TMP+1}")
    A(f"ds_write_b32 v{RL+9}, v{RL+8}", tag="vote")
    E.extend(mix(half(1), stores(0), CFG["estep"])); E.extend(reads(1)); E.extend(stores(1))
def gen_coop():
    SITES.clear(); LOOPS.clear()
    P = []; A = lambda t, **k: P.append(I(t, **k))
    A("s_cmp_ge_u32 s2, 256"); A("s_cbranch_scc1 L_end")
    A(f"s_and_b32 s{S_H}, s2, 7"); A(f"s_lshr_b32 s{S_TMP}, s2, 6"); A(f"s_lshl_b32 s{S_TMP}, s{S_TMP}, 3"); A(f"s_add_u32 s{S_H}, s{S_H}, s{S_TMP}")
    A(f"s_bfe_u32 s{S_J}, s2, 0x30003")
    if CFG["ipf"]:
        A(f"s_getpc_b64 {sr(S_VZS,2)}"); A("L_pc:"); A(f"s_mov_b32 s{S_VZS+2}, L_codeend-L_pc"); A(f"s_mov_b32 s{S_VZS+3}, 0x00020000")
        A(f"s_bfe_u32 s{S_VZS+4}, s2, 0x50003"); A(f"s_lshl_b32 s{S_VZS+4}, s{S_VZS+4}, 12"); A("v_lshlrev_b32 v1, 4, v0")
        A(f"buffer_load_dwordx4 v[252:255], v1, {sr(S_VZS)}, s{S_VZS+4} offen")
    load_ptrs_and_srds(A, prod=True, attn=True)
    stamp(A, 0)
    if gen.PROF: A(f"s_mov_b32 s{gen.S_TS+7}, 0")
    A(f"s_memrealtime {sr(S_NON,2)}")
    A(f"s_mov_b32 s{S_WS+2}, {64<<20:#x}")
    if CFG["tlb"]:
        A(f"buffer_load_dword v248, off, {sr(S_Q)}, 0"); A(f"s_mul_i32 s{S_TMP}, s{S_J}, {TILE}"); A(f"buffer_load_dword v249, off, {sr(S_WS)}, s{S_TMP}")
        A(f"s_sub_u32 s{S_TMP}, 32, s{S_H}"); A(f"s_mul_i32 s{S_TMP}, s{S_TMP}, {HEADWS}"); A(f"buffer_load_dword v250, off, {sr(S_WS)}, s{S_TMP}")
        A(f"buffer_load_dword v251, off, {sr(S_OUT)}, 0")
    addr_setup(A)
    O0 = Off(S_TMP + 2, S_TMP + 3, S_TMP + 4, S_TMP + 5)
    O1 = NEXT
    set_off(A, O0, S_J)
    K0, VV0, T0, Z0 = 64, 112, 144, 148
    K1, VV1, T1, Z1 = 192, 150, V_T, V_Z
    NV = V_ONES
    for z in (Z0, Z0 + 1, Z1, Z1 + 1): A(f"v_mov_b32 v{z}, 0")
    for i in range(3): P.extend(k_loads(i, K0 + 16 * i, O0))
    P.extend(v_loads(VV0, Z0, O0))
    A(f"s_or_b32 s{S_NON}, s{S_NON}, 1"); A(f"s_lshl_b32 s{S_HOFF}, s{S_H}, 3")
    A(f"v_lshl_add_u32 v3, s{S_W}, 6, v0"); A(f"v_lshlrev_b32 v3, 12, v3")
    A(f"v_mov_b32 v{NV}, s{S_NON}"); A(f"v_mov_b32 v{NV+1}, s{S_NON+1}"); A(f"v_mov_b32 v{NV+2}, 0"); A(f"v_mov_b32 v{NV+3}, 0")
    if DPROF:
        A(f"s_lshl_b32 s{S_HOFF}, s{S_H}, 2"); A(f"s_add_u32 s{S_HOFF}, s{S_HOFF}, 128"); A(f"s_mov_b32 s{S_NON+1}, 0"); A(f"v_mov_b32 v{NV+1}, 0")
        A(f"buffer_atomic_cmpswap {vr(NV,2)}, v3, {sr(S_DBG)}, s{S_HOFF} offen sc0 sc1")
    else: A(f"buffer_atomic_cmpswap_x2 {vr(NV)}, v3, {sr(S_DBG)}, s{S_HOFF} offen sc0 sc1")
    A("v_and_b32 v1, 15, v0"); A("v_lshrrev_b32 v2, 4, v0"); QV = 152; A(f"v_mul_u32_u24 v{QV}, 384, v1"); A(f"v_lshl_add_u32 v{QV}, v2, 4, v{QV}")
    if CFG.get("qco") == 1: A(f"v_lshlrev_b32 v{QV}, 4, v0"); A(f"v_add_u32 v{QV+1}, 3072, v{QV}")
    if CFG.get("qco") == 2:
        A(f"v_and_b32 v1, 7, v0"); A(f"v_lshrrev_b32 v2, 3, v0"); A(f"v_mul_u32_u24 v{QV}, 384, v1"); A(f"v_lshl_add_u32 v{QV}, v2, 4, v{QV}"); A(f"v_add_u32 v{QV+1}, 3072, v{QV}")
    A(f"s_mul_i32 s{S_TMP+6}, s{S_W}, 24576")
    qpos = [0]
    def qissue(upto):
        n = int(round(upto * 6))
        while qpos[0] < n:
            qb, s_ = divmod(qpos[0], 6)
            if qb and s_ == 0: A(f"s_add_u32 s{S_TMP+6}, s{S_TMP+6}, 6144")
            if CFG.get("qco") == 1: A(f"buffer_load_dwordx4 {Qreg(qb,s_)}, v{QV+s_//3}, {sr(S_Q)}, s{S_TMP+6} offen offset:{1024*(s_%3)}{LDQ}")
            elif CFG.get("qco") == 2: A(f"buffer_load_dwordx4 {Qreg(qb,s_)}, v{QV+s_%2}, {sr(S_Q)}, s{S_TMP+6} offen offset:{128*(s_//2)}{LDQ}")
            else: A(f"buffer_load_dwordx4 {Qreg(qb,s_)}, v{QV}, {sr(S_Q)}, s{S_TMP+6} offen offset:{64*s_}{LDQ}")
            qpos[0] += 1
    qissue(CFG["q1"])
    A(f"s_mov_b32 s{S_C768}, s{O0.o768}")
    A(f"s_mov_b32 s{S_PASS}, 0"); A(f"s_lshl_b32 s{S_PFL}, s{S_J}, 9"); A(f"s_mov_b32 s{S_J9}, s{S_PFL}")
    A(f"s_sub_u32 s{S_TMP}, 32, s{S_H}"); A(f"s_mul_i32 s{S_TMP}, s{S_TMP}, {HEADWS}"); A(f"s_lshl_b32 s{S_TMP+1}, s{S_H}, 15"); A(f"s_add_u32 s{S_TMP}, s{S_TMP}, s{S_TMP+1}")
    A(f"s_lshl_b32 s{S_TMP+1}, s{S_W}, 7"); A(f"s_add_u32 s{S_TMP}, s{S_TMP}, s{S_TMP+1}")
    A(f"v_mov_b32 v2, s{S_TMP}"); A(f"v_bfrev_b32 v{V_AT}, 1"); A("v_cmp_eq_u32 vcc, 0, v0"); A(f"v_cndmask_b32 v{V_AT}, v{V_AT}, v2, vcc")
    stamp(A, 8)
    for i in range(3): P.extend(k_comp(K0 + 16 * i, T0) + k_store(i, K0 + 16 * i, S_C768, True, 0))
    P.extend(v_comp(VV0, T0, Z0) + v_store(VV0, T0, S_C768, True, 0))
    A(f"v_readfirstlane_b32 s{S_TMP}, v{NV}"); A(f"v_readfirstlane_b32 s{S_TMP+1}, v{NV+1}")
    A(f"s_cmp_eq_u64 {sr(S_TMP,2)}, 0"); A(f"s_cselect_b64 {sr(S_NON,2)}, {sr(S_NON,2)}, {sr(S_TMP,2)}")
    A(f"v_mov_b32 v{NV}, s{S_NON}"); A(f"v_mov_b32 v{NV+1}, s{S_NON+1}")
    A(f"s_lshl_b32 s{S_TMP}, s{S_W}, 3"); A(f"v_mov_b32 v{NV+2}, s{S_TMP}")
    A(f"v_add_u32 v{NV+2}, {VOTE+16}, v{NV+2}")
    A(f"ds_write_b64 v{NV+2}, {vr(NV,2)}", tag="pds")
    qissue(CFG["q2"])
    stamp(A, 9)
    A(f"v_mov_b32 v{NV+2}, {VOTE+16}")
    A("s_barrier", waits=["pds"])
    A(f"ds_read_b64 {vr(NV,2)}, v{NV+2}")
    for f in range(12): P.append(k_read(0, f))
    zero_acc(A)
    A(f"v_readfirstlane_b32 s{S_NON}, v{NV}"); A(f"v_readfirstlane_b32 s{S_NON+1}, v{NV+1}")
    P.extend(post())
    A("v_and_b32 v2, 3, v0"); A("v_cmp_eq_u32 vcc, 0, v2"); A(f"v_mov_b32 v2, 0x3f803f80")
    for r in range(4): A(f"v_cndmask_b32 v{V_ONES+r}, 0, v2, vcc")
    stamp(A, 10)
    qissue(CFG["q3"])
    PX = 144
    for x in (1, 2):
        A(f"s_xor_b32 s{S_T}, s{S_J}, {x}"); A(f"s_lshl_b32 s{S_TMP}, s{S_T}, 9"); P.append(poll(PX + 2 * (x - 1), S_TMP))
    qissue(CFG["q4"])
    for x in (1, 2):
        A(f"s_xor_b32 s{S_T}, s{S_J}, {x}")
        P.append(cmpflag(PX + 2 * (x - 1))); A(f"s_mul_i32 s{DM[x-1]}, s{S_T}, {TILE}"); A("s_waitcnt lgkmcnt(0)"); A("s_nop 3")
        n = len(SITES); SITES.append(n)
        A(f"s_cbranch_vccnz L_go{x}"); A(f"s_mov_b32 s{S_SITE}, {n}"); A("s_branch L_wait"); A(f"L_ret{n}:")
        for f in range(12): P.append(k_read(0, f))
        A("s_waitcnt lgkmcnt(0)")
        A(f"L_go{x}:")
        stamp(A, 10 + x)
        if x == 2 and CFG["d2late"]: D2 = dma_group(x, DM[x-1])
        else: P.extend(dma_group(x, DM[x-1]))
        if x == 1: qissue(CFG["q5"])
    qissue(4)
    P.extend(late_poll(0))
    A(f"s_add_u32 s{S_TMP}, s{S_J}, 8"); set_off(A, NEXT, S_TMP)
    gen.V_P = V_V
    first_max(A)
    if CFG["d2late"]: P.extend(D2)
    pipe_init(A, P)
    stamp(A, 1)
    BA = block("L_loopA", 12, True, S_CNT)
    X1 = [I(f"s_mov_b32 s{S_CNT}, {CFG['nB']}")]; stamp(lambda t: X1.append(I(t)), 5)
    BB = block("L_loopB", 8, True, S_CNT)
    X2 = [I(f"s_mov_b32 s{S_CNT}, {CFG['nC']}")]; stamp(lambda t: X2.append(I(t)), 6)
    BC = block("L_loopC", 4, False, S_CNT)
    E = []; A = lambda t, **k: E.append(I(t, **k))
    stamp(A, 2)
    if CFG["epi2"]: epilogue2(E, CFG.get("ostf", ""))
    else: epilogue(A, CFG.get("ostf", ""))
    stamp(A, 3)
    if gen.PROF: A("s_waitcnt vmcnt(0)"); stamp(A, 4)
    if gen.PROF and not DPROF: stamps_out(A)
    if DPROF:
        A(f"v_lshl_add_u32 v2, s{S_W}, 6, v0"); A("v_lshlrev_b32 v2, 12, v2")
        for i in range(8):
            A(f"s_sub_u32 s{S_TMP}, s{gen.S_TS+i}, s{gen.S_TS}") if 0 < i < 7 else A(f"s_mov_b32 s{S_TMP}, s{gen.S_TS+i}") if i else A(f"s_mov_b32 s{S_TMP}, 0")
            A(f"v_mov_b32 v16, s{S_TMP}"); A(f"buffer_atomic_add v16, v2, {sr(S_DBG)}, 0 offen offset:{32+4*i} sc1")
            A(f"s_not_b32 s{S_TMP}, s{gen.S_TS}") if i == 0 else A(f"s_mov_b32 s{S_TMP}, s{gen.S_TS+i}")
            A(f"v_mov_b32 v17, s{S_TMP}"); A(f"buffer_atomic_umax v17, v2, {sr(S_DBG)}, 0 offen offset:{4*i} sc1"); A("s_nop 4")
    A(f"v_mov_b32 v{V_S+4}, {VOTE}")
    A("s_barrier", waits=["vote"])
    A(f"ds_read_b128 {vr(V_S)}, v{V_S+4}")
    A(f"v_or3_b32 v{V_S+4}, v{V_S}, v{V_S+1}, v{V_S+2}"); A(f"v_or_b32 v{V_S+4}, v{V_S+4}, v{V_S+3}"); A(f"v_readfirstlane_b32 s{S_TMP}, v{V_S+4}")
    A(f"s_cmp_lg_u32 s{S_PASS}, 0"); A("s_cbranch_scc1 L_end")
    A(f"s_cmp_eq_u32 s{S_TMP}, 0"); A("s_cbranch_scc1 L_end")
    if CFG.get('abl') or CFG.get('pabl') or CFG.get('qco'): A("s_branch L_end")
    A("s_waitcnt vmcnt(0) lgkmcnt(0)")
    G = []; A = lambda t, **k: G.append(I(t, **k))
    A(f"s_xor_b32 s{S_T}, s{S_J}, 1"); A(f"s_lshl_b32 s{S_TMP}, s{S_T}, 9"); G.append(poll(V_POLL, S_TMP)); G.append(cmpflag()); A("s_nop 4"); G.extend(check_site(False))
    A("s_barrier")
    gen.V_P = V_V + 4
    fallback_max(A)
    A(f"s_mov_b32 s{S_PASS}, 1")
    for t in range(3):
        A(f"s_xor_b32 s{S_T}, s{S_J}, {t}"); A(f"s_mul_i32 s{S_DMA}, s{S_T}, {TILE}"); G.extend(dma_group(t))
    zero_acc(A)
    G.extend(late_poll(0) + late_poll(1)); pipe_init(A, G)
    A("s_waitcnt vmcnt(0)"); A("s_barrier")
    for f in range(12): G.append(k_read(0, f))
    A("s_waitcnt lgkmcnt(0)"); A(f"s_mov_b32 s{S_CNT}, 16"); A("s_nop 7"); A("s_branch L_loopC")
    W = wait_routine()
    Z = [I("L_end:"), I("s_endpgm"), I("L_codeend:")]
    n = finalize([("P", P), ("A", BA), ("x", X1), ("B", BB), ("B", BB), ("x", X2), ("C", BC), ("C", BC), ("E", E), ("G", G), ("C", BC), ("C", BC)],
                 [("P", P), ("A", BA), ("x", X1), ("B", BB), ("x", X2), ("C", BC), ("E", E)],
                 [("W", W)])
    print("nops", n, "sizes", len(P), len(BA), len(BB), len(BC), len(E), len(G), len(W), file=sys.stderr)
    return "".join(text(x) for x in (P, BA, X1, BB, X2, BC, E, G, W, Z))
def file_coop():
    s = HDR + f"; @launch grid=(256,1,1) block=(256,1,1) lds={STG+4*STW}\n"
    s += '.amdgcn_target "amdgcn-amd-amdhsa--gfx950"\n.text\n'
    s += khead(NAME + "_kernel") + gen_coop()
    s += '.section .rodata,"a"\n.p2align 6\n' + kd(NAME + "_kernel")
    return s
if __name__ == "__main__":
    gen.PROF = 4 if "prof4" in sys.argv else 3 if "prof3" in sys.argv else 2 if "prof2" in sys.argv else ("prof" in sys.argv)
    if "cyc" in sys.argv: gen.CLK = "s_memtime"
    for a in sys.argv[2:]:
        if "=" in a:
            k, v = a.split("=")
            if k == "STM": gen.STM = eval(v)
            elif k in globals(): globals()[k] = eval(v)
            else: CFG[k] = eval(v)
    open(sys.argv[1], "w").write(file_coop())
```

```python
import sys, re
sys.path.insert(0, "dev")
import gen
from gen import *
gen.V_P = None
def Preg(qb): return V_S + 8 * qb
V_AT = 1; V_POLL = 2
V_Z = 10
V_PA = 184; V_T = 188; V_VB = 192; V_KA_ = 224; V_KB_ = 240
S_C3 = 3; S_W3072 = 37; S_J = gen.S_J; S_CNT = 41
S_N768 = 45; S_N384 = 46; S_N64 = 47; S_N768B = 49
S_PASS = 57; gen.S_PROF = 58
S_HOFF = 76; S_C768 = 77; S_C384 = 78; S_PTW = S_C768; S_T = 79
S_NON = 88; S_FLO = 90; S_PFL = 91; S_SITE = 100; S_SPIN = 101
S_C4 = S_C3; S_TN = 48
FLAGB = 32 * HEADWS
ST = " sc1"
VINT = 0
DPROF = 0
LDK = LDV = LDQ = " sc0 sc1 nt"
class Off:
    def __init__(s, o768, o768b, o384, o64): s.o768, s.o768b, s.o384, s.o64 = o768, o768b, o384, o64
NEXT = Off(S_N768, S_N768B, S_N384, S_N64); CUR = Off(S_C768, None, S_C384, None)
KLD, KSC, VLD, VSC = V_PA, V_PA + 1, V_PA + 2, V_PA + 3
HT = TILE // 2; V_VA = 5; PP = [2, 6]; DM = [S_DMA, S_TN]; S_J9 = S_HOFF
def k_read(slot, f): return I(f"ds_read_b128 {vr(V_K+4*f)}, v{V_KA} offset:{slot*HT + f*1024}")
def v_read(slot, db): return I(f"ds_read_b128 {vr(V_V+4*(db%6))}, v{V_VA} offset:{slot*HT + db*256}")
def addr_setup(A):
    A(f"s_mul_i32 s{S_W3072}, s{S_W}, 3072")
    A(f"v_lshlrev_b32 v{V_KA}, 4, v0")
    A("v_and_b32 v1, 15, v0"); A("v_lshrrev_b32 v2, 4, v0")
    A(f"v_mul_u32_u24 v{KLD}, 768, v1"); A(f"v_lshl_add_u32 v{KLD}, v2, 5, v{KLD}")
    A(f"v_lshlrev_b32 v{KSC}, 4, v2")
    A(f"v_add_u32 v{V_D0}, s{S_W3072}, v{V_KA}"); A(f"v_add_u32 v{V_D1}, 12288, v{V_D0}")
    A(f"v_mul_u32_u24 v{VLD}, 12, v0"); A(f"v_add_u32 v{VLD}, s{S_W3072}, v{VLD}")
    A(f"s_lshr_b32 s{S_TMP}, s{S_W}, 1"); A(f"s_mul_i32 s{S_TMP}, s{S_TMP}, {16*768}")
    A(f"s_and_b32 s{S_TMP+1}, s{S_W}, 1"); A(f"s_mul_i32 s{S_TMP+2}, s{S_TMP+1}, 384"); A(f"s_add_u32 s{S_TMP}, s{S_TMP}, s{S_TMP+2}")
    A(f"v_add_u32 v{KLD}, s{S_TMP}, v{KLD}")
    A(f"s_mul_i32 s{S_TMP+2}, s{S_TMP+1}, 192"); A(f"v_add_u32 v{KSC}, s{S_TMP+2}, v{KSC}")
    A(f"v_and_b32 v3, 3, v0"); A(f"v_bfe_u32 v{VSC}, v0, 2, 1"); A(f"v_lshlrev_b32 v{VSC}, 5, v{VSC}"); A(f"v_lshl_add_u32 v{VSC}, v3, 1, v{VSC}")
    A(f"s_lshl_b32 s{S_TMP}, s{S_W}, 3"); A(f"v_add_u32 v{VSC}, s{S_TMP}, v{VSC}")
    A(f"v_mul_u32_u24 v{V_VA}, 3072, v2"); A(f"v_lshl_add_u32 v{V_VA}, v1, 4, v{V_VA}"); A(f"v_add_u32 v{V_VA}, {4*HT}, v{V_VA}")
def set_off(A, off, st, ptw=None):
    A(f"s_mul_i32 s{off.o768}, s{st}, {32*768}")
    if off.o768b is not None: A(f"s_add_u32 s{off.o768b}, s{off.o768}, {16*768}")
    A(f"s_mul_i32 s{off.o384}, s{st}, 384")
    if off.o64 is not None: A(f"s_lshl_b32 s{off.o64}, s{st}, 6")
def k_loads(i, R, off):
    return [I(f"buffer_load_dwordx4 {vr(R)}, v{KLD}, {sr(S_QK)}, s{off.o768} offen offset:{128*i}{LDK}"),
            I(f"buffer_load_dwordx4 {vr(R+4)}, v{KLD}, {sr(S_QK)}, s{off.o768} offen offset:{128*i+16}{LDK}"),
            I(f"buffer_load_dwordx4 {vr(R+8)}, v{KSC}, {sr(S_KZ)}, s{off.o384} offen offset:{64*i}"),
            I(f"buffer_load_dwordx4 {vr(R+12)}, v{KSC}, {sr(S_KS)}, s{off.o384} offen offset:{64*i}")]
def unpk(L):
    o = []
    for i in L:
        m = re.match(r"v_pk_(add|mul)_f32 v\[(\d+):\d+\], v\[(\d+):\d+\], ([vs])\[(\d+):\d+\]", i.text)
        if not m: o.append(i); continue
        d, a, k, b = int(m.group(2)), int(m.group(3)), m.group(4), int(m.group(5))
        op = "v_subrev_f32" if m.group(1) == "add" else "v_mul_f32"
        o += [I(f"{op} v{d+h}, {k}{b+h}, v{a+h}") for h in range(2)]
    return o
def k_comp(R, T):
    c = []
    if CFG["kpipe"]:
        A_ = lambda p: R + 2 * p
        cv = lambda r: f"v_cvt_f32_i32 v{r}, v{r}"
        zl = lambda p: f"v_lshlrev_b32 v{T}, 16, v{R+8+p}"
        zh = lambda p: f"v_and_b32 v{T+1}, s{S_MASK}, v{R+8+p}"
        c += [cv(R), cv(R + 1), zl(0), rnd(R, R), zh(0), rnd(R + 1, R + 1)]
        for p in range(4):
            a = A_(p); b = a + 1; z = R + 8 + p; s = R + 12 + p; n = p < 3; a2 = a + 2; b2 = a + 3
            c += [f"v_lshlrev_b32 v{T+2}, 16, v{s}", f"v_and_b32 v{T+3}, s{S_MASK}, v{s}",
                  f"v_pk_add_f32 {vr(a,2)}, {vr(a,2)}, {vr(T,2)} neg_lo:[0,1] neg_hi:[0,1]"] + ([cv(a2)] if n else []) + \
                 [f"v_pk_mul_f32 {vr(T+2,2)}, {vr(T+2,2)}, {sr(S_C,2)}"] + ([cv(b2)] if n else []) + [rnd(a, a)] + ([zl(p+1)] if n else []) + \
                 [rnd(b, b)] + ([zh(p+1)] if n else []) + [f"v_pk_mul_f32 {vr(a,2)}, {vr(a,2)}, {vr(T+2,2)}"] + ([rnd(a2, a2), rnd(b2, b2)] if n else []) + \
                 [f"v_cvt_pk_bf16_f32 v{z}, v{a}, v{b}"]
        return [I(x) for x in c]
    for p in range(4):
        a, b = R + 2 * p, R + 2 * p + 1; z = R + 8 + p; s = R + 12 + p
        c += [f"v_cvt_f32_i32 v{a}, v{a}", f"v_cvt_f32_i32 v{b}, v{b}",
              f"v_lshlrev_b32 v{T}, 16, v{z}", f"v_and_b32 v{T+1}, s{S_MASK}, v{z}",
              rnd(a, a), rnd(b, b),
              f"v_lshlrev_b32 v{T+2}, 16, v{s}", f"v_and_b32 v{T+3}, s{S_MASK}, v{s}",
              f"v_pk_add_f32 {vr(a,2)}, {vr(a,2)}, {vr(T,2)} neg_lo:[0,1] neg_hi:[0,1]",
              f"v_pk_mul_f32 {vr(T+2,2)}, {vr(T+2,2)}, {sr(S_C,2)}",
              rnd(a, a), rnd(b, b),
              f"v_pk_mul_f32 {vr(a,2)}, {vr(a,2)}, {vr(T+2,2)}",
              f"v_cvt_pk_bf16_f32 v{z}, v{a}, v{b}"]
    return [I(x) for x in c]
def k_store(i, R, ptw, glob=True, slot=None):
    o = []
    if glob: o.append(I(f"buffer_store_dwordx4 {vr(R+8)}, v{V_D0}, {sr(S_WS)}, s{ptw} offen offset:{1024*i}{ST}", tag="pst"))
    if slot is not None: o.append(I(f"ds_write_b128 v{V_D0}, {vr(R+8)} offset:{slot*HT+1024*i}", tag="pds"))
    return o
def v_loads(R, Z, off):
    ld = [I(f"buffer_load_short_d16_hi v{Z}, v{VSC}, {sr(S_VZ)}, s{off.o64} offen"),
          I(f"buffer_load_short_d16_hi v{Z+1}, v{VSC}, {sr(S_VS)}, s{off.o64} offen")]
    for t in range(8):
        ld.append(I(f"buffer_load_dwordx3 {vr(R+4*t,3)}, v{VLD}, {sr(S_QV)}, s{off.o768 if t < 4 else off.o768b} offen offset:{768*(t%4)}{LDV}"))
    return ld
def v_comp(R, X, Z):
    c = []
    for t in range(8): c.append(f"v_readlane_b32 s{S_VZS+t}, v{Z}, {t}")
    for t in range(8): c.append(f"v_readlane_b32 s{S_VSS+t}, v{Z+1}, {t}")
    out = [R, R + 4, X]
    for u in range(4):
        g = R + 8 * u
        c += [f"v_cvt_f32_i32 v{g+7}, v{g+6}", f"v_cvt_f32_i32 v{g+6}, v{g+2}", f"v_cvt_f32_i32 v{g+2}, v{g+1}",
              f"v_cvt_f32_i32 v{g+3}, v{g+5}", f"v_cvt_f32_i32 v{g+1}, v{g+4}", f"v_cvt_f32_i32 v{g}, v{g}"]
        pr = [g, g + 2, g + 6]
        if not VINT:
          for p in (pr[2], pr[1], pr[0]): c += [rnd(p, p), rnd(p + 1, p + 1)]
          for p in (pr[2], pr[1], pr[0]): c.append(f"v_pk_add_f32 {vr(p,2)}, {vr(p,2)}, {sr(S_VZS+2*u,2)} neg_lo:[0,1] neg_hi:[0,1]")
          for p in (pr[2], pr[1], pr[0]): c += [rnd(p, p), rnd(p + 1, p + 1)]
          for p in (pr[2], pr[1], pr[0]): c.append(f"v_pk_mul_f32 {vr(p,2)}, {vr(p,2)}, {sr(S_VSS+2*u,2)}")
        elif VINT == 2:
          for p in (pr[2], pr[1], pr[0]): c.append(f"v_pk_add_f32 {vr(p,2)}, {vr(p,2)}, 4.0 op_sel_hi:[1,0] neg_lo:[0,1] neg_hi:[0,1]")
        for j in (2, 1, 0): c.append(f"v_cvt_pk_bf16_f32 v{out[j]+u}, v{pr[j]}, v{pr[j]+1}")
    return [I(x) for x in c]
def v_store(R, X, ptw, glob=True, slot=None):
    out = [R, R + 4, X]; o = []
    for j in range(3):
        if glob: o.append(I(f"buffer_store_dwordx4 {vr(out[j])}, v{V_D1}, {sr(S_WS)}, s{ptw} offen offset:{1024*j}{ST}", tag="pst"))
        if slot is not None: o.append(I(f"ds_write_b128 v{V_D1}, {vr(out[j])} offset:{(3+slot)*HT+1024*j}", tag="pds"))
    return o
DMAF = " sc1"
def dma_group(slot, S_DMA=S_DMA):
    out = [I(f"s_add_u32 m0, s{S_W3072}, {slot*HT}")]
    for k in range(3): out.append(I(f"buffer_load_dwordx4 v{V_D0}, {sr(S_WS)}, s{S_DMA} offen offset:{1024*k}{DMAF} lds", tag=f"dma{slot}"))
    out.append(I(f"s_add_u32 m0, s{S_W3072}, {(4+slot)*HT}"))
    for k in range(3): out.append(I(f"buffer_load_dwordx4 v{V_D1}, {sr(S_WS)}, s{S_DMA} offen offset:{1024*k}{DMAF} lds", tag=f"dma{slot}"))
    return out
def poll(dst=V_POLL, so=S_FLO): return I(f"buffer_load_dwordx2 {vr(dst,2)}, v{V_AT}, {sr(S_WS)}, s{so} offen sc1")
def post(V_T=V_T):
    return [I(f"v_mov_b32 v{V_T}, s{S_NON}"), I(f"v_mov_b32 v{V_T+1}, s{S_NON+1}"),
            I(f"buffer_store_dwordx2 {vr(V_T,2)}, v{V_AT}, {sr(S_WS)}, s{S_PFL} offen sc1", waits=["pst"]),
            I(f"s_add_u32 s{S_PFL}, s{S_PFL}, {8*512}")]
def cmpflag(src=V_POLL): return I(f"v_cmp_eq_u64 vcc, {sr(S_NON,2)}, {vr(src,2)}")
SITES = []
LOOPS = set()
def check_site(loop=True):
    n = len(SITES); SITES.append(n)
    if loop: LOOPS.add(n)
    return [I(f"s_cbranch_vccz L_slow{n}"), I(f"L_ret{n}:")]
def next_tile():
    return [I(f"s_add_u32 s{S_C4}, s{S_C4}, 512"), I(f"s_xor_b32 s{S_FLO}, s{S_C4}, s{S_J9}"), I(f"s_and_b32 s{S_FLO}, s{S_FLO}, 0x7e00")]
def late_poll(i):
    return [I(f"s_xor_b32 s{S_TMP}, s{S_J9}, {(i+3)*512}"), poll(PP[i % 2], S_TMP)]
def pipe_init(A, L, second=True):
    for i in range(2): A(f"s_xor_b32 s{S_TMP}, s{S_J9}, {(i+3)*512}"); A(f"s_mul_i32 s{DM[i]}, s{S_TMP}, {TILE//512}")
    A(f"s_mov_b32 s{S_C4}, {4*512}")
def softmax_gaps(gaps, qb, g0):
    s0, s1, p = Sreg(qb, 0), Sreg(qb, 1), Preg(qb)
    for r in range(4): gaps[g0 + 1 + r].append(I(f"v_exp_f32 v{s0+r}, v{s0+r}"))
    gaps[g0 + 5] += [I(f"v_cvt_pk_bf16_f32 v{p}, v{s0}, v{s0+1}"), I(f"v_cvt_pk_bf16_f32 v{p+1}, v{s0+2}, v{s0+3}")]
    for r in range(4): gaps[g0 + 6 + r].append(I(f"v_exp_f32 v{s1+r}, v{s1+r}"))
    gaps[g0 + 10] += [I(f"v_cvt_pk_bf16_f32 v{p+2}, v{s1}, v{s1+1}"), I(f"v_cvt_pk_bf16_f32 v{p+3}, v{s1+2}, v{s1+3}")]
BG = 59
def iter_parts(slot, do_post=False, do_poll=True, chk=True, abl=''):
    M = []
    for qb in range(4):
        for tb in range(2):
            for s in range(6):
                S = vr(Sreg(qb, tb))
                M.append(mf(S, Kreg(tb, s), Qreg(qb, s), vr(V_NM + 4 * qb) if s == 0 else S))
    def pv(db, qb): o = ar(Oreg(db, qb)); return mf(o, vr(V_V + 4 * (db % 6)), vr(Preg(qb)), o)
    def on(qb): o = ar(Lreg(qb)); return mf(o, vr(V_ONES), vr(Preg(qb)), o)
    for db in range(4):
        for qb in range(3): M.append(pv(db, qb))
    for qb in range(3): M.append(on(qb))
    for db in range(4): M.append(pv(db, 3))
    M.append(on(3))
    for db in range(4, 12):
        for qb in range(4): M.append(pv(db, qb))
    gaps = [[] for _ in range(100)]
    for qb in range(4): softmax_gaps(gaps, qb, 12 * qb + 11)
    def tg(i, t): i.tag = t; return i
    for db in range(6): gaps[CFG["vr0"][db]].append(tg(v_read(slot, db), f"v{db}"))
    for m, tags in CFG["mw"].items(): M[m].waits = tuple(tags)
    nslot = (slot + 1) % 4
    nt = next_tile()
    for ins, p in zip(nt, CFG["ntp"]): gaps[p].append(ins)
    if chk: gaps[CFG["cfp"]].append(cmpflag(PP[slot % 2]))
    gaps[BG] += [I("s_barrier", waits=[f"dma{nslot}"] + (["pst"] if do_post else []))]
    gaps[BG + 1] += (check_site() if chk else []) + ([*post()] if do_post else []) + ([poll(PP[slot % 2])] if do_poll else [])
    dg = dma_group((slot + 3) % 4, DM[slot % 2])
    gaps[CFG['dmp']].append(I(f"s_mul_i32 s{DM[slot % 2]}, s{S_FLO}, {TILE//512}"))
    for ins, p in zip(dg, CFG['dmap']): gaps[p].append(ins)
    for db, p in zip(range(6, 12), CFG['vrp']): gaps[p].append(tg(v_read(slot, db), f'v{db}'))
    for f, p in enumerate(CFG['krp']): gaps[p].append(tg(k_read(nslot, f), f'k{f}'))
    if abl:
        def keep(i):
            t = i.text if hasattr(i, 'text') else str(i)
            if 'b' in abl and 's_barrier' in t: return False
            if 'd' in abl and (' lds' in t or 'm0' in t): return False
            if 'k' in abl and 'ds_read' in t and int(re.search(r'v\[(\d+)', t).group(1)) < V_V: return False
            if 'v' in abl and 'ds_read' in t and int(re.search(r'v\[(\d+)', t).group(1)) >= V_V: return False
            if 'e' in abl and 'v_exp' in t: return False
            if 'c' in abl and 'v_cvt_pk' in t: return False
            if 'p' in abl and ('v_cmp_eq_u64' in t or 'vccz' in t or 'buffer_load_dwordx2' in t): return False
            if 's' in abl and t.startswith('s_') and 'barrier' not in t and 'm0' not in t and 'vccz' not in t: return False
            return True
        gaps = [[i for i in g if keep(i)] for g in gaps]
        if 'o' in abl: M = [I("; none") if f"v[{V_ONES}:" in m.text else m for m in M]
    return M, gaps
def cost(ins):
    if ins.kind == "label": return 0
    if ins.kind == "trans": return 2
    if ins.kind in ("dma", "vload", "vstore"): return CFG.get("cvm", 1)
    if ins.kind == "lds": return CFG.get("clds", 1)
    return 1
def place(stream, gl, start, end, cap=2):
    if CFG["unpk"]: stream = unpk(stream)
    slots = []
    for x in range(start, end):
        g = gl[x // 100][x % 100]
        if x % 100 in (BG, BG + 1): continue
        fr = max(0, cap - sum(cost(i) for i in g))
        if CFG["pmode"] == 1 and cap == 2: fr = min(fr, 1)
        slots += [x] * fr
    if len(slots) < len(stream): return place(stream, gl, start, end, cap + 1)
    wt = [(CFG["pkw"] if "v_pk_" in i.text else 1) for i in stream]; tot = sum(wt); acc = 0
    for k, ins in enumerate(stream):
        x = slots[int(acc * len(slots) // tot)]; acc += wt[k]
        gl[x // 100][x % 100].append(ins)
def sg_adv():
    return [I(f"s_mov_b32 s{S_C768}, s{S_N768}"), I(f"s_mov_b32 s{S_C384}, s{S_N384}"),
            I(f"s_add_u32 s{S_N768}, s{S_N768}, {8*TILE}"), I(f"s_add_u32 s{S_N768B}, s{S_N768B}, {8*TILE}"),
            I(f"s_add_u32 s{S_N384}, s{S_N384}, {8*384}"), I(f"s_add_u32 s{S_N64}, s{S_N64}, 512")]
def mix(main, extra, step):
    out = []; e = list(extra)
    for k, ins in enumerate(main):
        out.append(ins)
        if e and k % step == step - 1: out.append(e.pop(0))
    return out + e
def prod_tail(): return k_loads(0, V_KA_, NEXT) + sg_adv()
def prod_stream():
    A_, B_ = V_KA_, V_KB_
    st = CFG["mixs"]
    s = []
    s += k_comp(B_, V_T) + k_store(1, B_, S_PTW)
    s += mix(k_comp(A_, V_T), k_loads(1, B_, NEXT), st) + k_store(0, A_, S_PTW)
    vs = v_store(V_VB, V_T, S_PTW)
    s += mix(v_comp(V_VB, V_T, V_Z), k_loads(2, A_, CUR), st) + vs[2:]
    s += mix(k_comp(A_, V_T), vs[:2] + v_loads(V_VB, V_Z, NEXT), 4) + k_store(2, A_, S_PTW)
    pa = CFG.get("pabl", "")
    if 'P' in pa: s = [i for i in s if i.kind not in ("valu",)]
    if 'R' in pa: s = [i for i in s if "readlane" not in i.text]
    if 'Q' in pa: s = [i for i in s if "v_pk_" not in i.text]
    if 'L' in pa: s = [i for i in s if i.kind != "vload"]
    if 'W' in pa:
        for i in s:
            if i.kind == "vload": i.wr = []
    if 'Z' in pa: s = [i for i in s if not (i.kind == "vload" and "nt" not in i.text)]
    if 'K' in pa: s = [i for i in s if not (i.kind == "vload" and "x4" in i.text and "nt" in i.text)]
    if 'V' in pa: s = [i for i in s if not (i.kind == "vload" and "x3" in i.text)]
    if 'S' in pa: s = [i for i in s if i.kind != "vstore"]
    return s
def first_streams():
    A_, B_ = V_KA_, V_KB_
    ld = k_loads(0, A_, NEXT) + k_loads(1, B_, NEXT) + v_loads(V_VB, V_Z, NEXT) + sg_adv()
    m = k_comp(A_, V_T) + k_store(0, A_, S_PTW)
    m += mix(k_comp(B_, V_T), k_loads(2, A_, CUR), CFG["mixs"]) + k_store(1, B_, S_PTW)
    vs = v_store(V_VB, V_T, S_PTW)
    m += v_comp(V_VB, V_T, V_Z) + vs[2:]
    m += mix(k_comp(A_, V_T), vs[:2], 6) + k_store(2, A_, S_PTW)
    tl = k_loads(1, B_, NEXT) + k_loads(0, A_, NEXT) + v_loads(V_VB, V_Z, NEXT) + sg_adv()
    return ld, m, tl
def block(label, n, prod, cnt_reg):
    own = {8: (1,), 12: (5,), 4: ()}[n]
    pe = n - 8 + CFG["peB"] if prod else -1
    late = CFG["late"] if n == 12 else {}
    parts = [iter_parts(i % 4, do_post=(i == pe), do_poll=((i + 2) % n not in own or n == 12 and i + 2 >= n) and i + 2 not in late and not (n == 12 and i == 11), chk=(i not in own), abl=(CFG.get('abl','') if n == 4 else '')) for i in range(n)]
    gl = [p[1] for p in parts]
    for i, x in late.items(): gl[x // 100][x % 100] += late_poll(i)
    def sched(i0, nv):
        A_, B_ = V_KA_, V_KB_
        def vm(it, ops):
            for ins, g in zip(ops, CFG["vw"]): x = (i0 + it) * 100 + g; gl[x // 100][x % 100].append(ins)
            assert len(ops) <= len(CFG["vw"])
        vs = v_store(V_VB, V_T, S_PTW); e = CFG["ve"]; o = i0 * 100
        vm(1, k_store(1, B_, S_PTW) + k_loads(1, B_, NEXT)); vm(2, k_store(0, A_, S_PTW) + k_loads(2, A_, CUR))
        vl = v_loads(V_VB, V_Z, NEXT); a_, b_ = CFG["vsp"]
        vm(2 + nv, vs[2:] + vs[:2] + vl[:a_]); vm(3 + nv, k_store(2, A_, S_PTW) + k_loads(0, A_, NEXT) + vl[a_:b_]); vm(4 + nv, vl[b_:])
        place(k_comp(B_, V_T), gl, o + CFG["kb0"] * (n == 12), o + e); place(k_comp(A_, V_T), gl, o + 100, o + 100 + e); place(v_comp(V_VB, V_T, V_Z), gl, o + 200, o + 100 + 100 * nv + e)
        place(k_comp(A_, V_T), gl, o + 201 + 100 * nv, o + 200 + 100 * nv + e); place(sg_adv(), gl, o + 450 + 100 * nv, o + 496 + 100 * nv)
    if n == 12:
        ld, m, tl = first_streams()
        pg = CFG["pg"]
        gl[pg // 100][pg % 100] += post(PP[1])
        place(ld, gl, CFG["l0"], CFG["l1"]); place(m, gl, CFG["m0"], CFG["m1"]); place(tl, gl, CFG["t0"], CFG["t1"])
        sched(CFG["sa"], 2)
    elif prod: sched(0, CFG["nv"])
    if n == 4 and CFG.get("dummy"):
        place([I(CFG["dummy"].replace("D", str(192 + 2 * (k % 8))).replace("E", str(193 + 2 * (k % 8)))) for k in range(4 * CFG.get("dn", 40))], gl, 0, 400)
    L = [I(".p2align 6"), I(f"{label}:")]
    for it, (M, gaps) in enumerate(parts):
        if n == 12: stamp(lambda t: L.append(I(t)), f"a{it}")
        if n == 8: stamp(lambda t: L.append(I(t)), f"b{it}")
        for m, g in zip(M, gaps): L.append(m); L.extend(g)
    if n != 12: L += [I(f"s_sub_u32 s{cnt_reg}, s{cnt_reg}, 1"), I(f"s_cmp_lg_u32 s{cnt_reg}, 0"), I(f"s_cbranch_scc1 {label}")]
    return L
SPIN_LIMIT = 40
def wait_routine():
    L = []; A = lambda t, **k: L.append(I(t, **k))
    X = V_K
    for n in SITES:
        A(f"L_slow{n}:"); A(f"s_mov_b32 s{S_SITE}, {n}"); A("s_branch L_waitl" if n in LOOPS else "s_branch L_wait")
    A("L_waitl:"); A(f"s_sub_u32 s{S_T}, s{S_C4}, 1024"); A(f"s_xor_b32 s{S_T}, s{S_T}, s{S_J9}"); A(f"s_bfe_u32 s{S_T}, s{S_T}, 0x60009")
    A("L_wait:"); A("s_waitcnt vmcnt(0) lgkmcnt(0)"); A(f"s_mov_b32 s{S_SPIN}, {SPIN_LIMIT}")
    A("L_spin:")
    if gen.PROF: A(f"s_add_u32 s{gen.S_TS+7}, s{gen.S_TS+7}, 100")
    A(f"s_lshl_b32 s{S_TMP}, s{S_T}, 9")
    L.append(poll(X, S_TMP)); A("s_waitcnt vmcnt(0)")
    L.append(cmpflag(X)); A("s_nop 4"); A("s_cbranch_vccnz L_wret")
    A("s_sleep 4"); A(f"s_sub_u32 s{S_SPIN}, s{S_SPIN}, 1"); A(f"s_cmp_lg_u32 s{S_SPIN}, 0"); A("s_cbranch_scc1 L_spin")
    SV = Sreg(0, 1); T = Sreg(1, 1); Z = Sreg(2, 1)
    for i in range(16): A(f"v_writelane_b32 v{SV}, s{S_VZS+i}, {i}")
    E = Off(S_TMP + 2, S_TMP + 3, S_TMP + 4, S_TMP + 5)
    set_off(A, E, S_T)
    A(f"v_mov_b32 v{Z}, 0"); A(f"v_mov_b32 v{Z+1}, 0")
    for i in range(3): L.extend(k_loads(i, X + 16 * i, E))
    for i in range(3): L.extend(k_comp(X + 16 * i, T)); L.extend(k_store(i, X + 16 * i, E.o768))
    A("s_nop 1")
    L.extend(v_loads(X, Z, E)); L.extend(v_comp(X, T, Z)); L.extend(v_store(X, T, E.o768))
    for i in range(16): A(f"v_readlane_b32 s{S_VZS+i}, v{SV}, {i}")
    A("s_waitcnt vmcnt(0)")
    A("L_wret:"); A("s_nop 7")
    for n in SITES[:-1]: A(f"s_cmp_eq_u32 s{S_SITE}, {n}"); A(f"s_cbranch_scc1 L_ret{n}")
    A(f"s_branch L_ret{SITES[-1]}")
    return L

def interleave(main, extra, start=0, every=None):
    if not extra: return main
    n = len(main) - start
    out = main[:start]; k = 0
    for i, ins in enumerate(main[start:]):
        out.append(ins)
        while k < len(extra) and (k + 1) * n <= (i + 1) * len(extra) * 1.0 + 1e-9 if every is None else (k < len(extra) and i % every == every - 1 and not out[-1] is extra[k-1]):
            out.append(extra[k]); k += 1
            if every is not None: break
    out += extra[k:]
    return out
CFG = dict(eq=1, early=1, tlb2=0, vsp=(0,2), ostf=' sc1', epi2=1, estep=2, unpk=1, kpipe=0, pmode=0, pkw=1, sched=1, vw=[0,4,8,13,18,23,27,30,35,38,42,46,50], ve=98, vb=0, mixs=6, tl=50, mw={47:['v5'],80:['v9'],92:['v11'],0:['k5'],4:['k11']}, vr0=[1,3,5,7,9,11], ntp=[22,23,34], cfp=58, dmap=[58,62,70,78,80,86,92,98], vrp=[64,65,66,67,72,76], krp=[61,63,68,69,71,73,74,75,77,79,81,83], tlb=0, ipf=0, nB=5, nC=3, peB=7, pm=30, q1=0.5, q2=1.5, q3=2.5, q4=4, q5=4, d2late=1, late={1: 30, 6: 608, 7: 661}, dmp=99, pg=520, l0=0, l1=100, m0=130, m1=398, t0=400, t1=450, sa=5, nv=2, kb0=0)
def rowmax2(A, src, off):
    gen.V_P = V_V
    rowmax_to_negm(A, src, off)
STG = VOTE + 64; STW = 12800
def epilogue2(E, stflags=""):
    A = lambda t, **k: E.append(I(t, **k))
    RL = V_S
    for qb in range(4): A(f"v_accvgpr_read_b32 v{RL+4+qb}, a{Lreg(qb)}")
    for qb in range(4): A(f"v_rcp_f32 v{RL+qb}, v{RL+4+qb}")
    WA = RL + 12; RA = RL + 13
    A("v_and_b32 v3, 15, v0"); A("v_lshrrev_b32 v2, 4, v0"); A(f"v_mul_u32_u24 v3, 400, v3"); A("v_mul_u32_u24 v2, 24, v2")
    A(f"s_mul_i32 s{S_TMP+3}, s{S_W}, {STW}"); A(f"s_add_u32 s{S_TMP+3}, s{S_TMP+3}, {STG}"); A(f"v_add3_u32 v{WA}, v3, v2, s{S_TMP+3}")
    def comp(qb, e, t):
        c = []
        for r in range(4):
            for j in range(3): c.append(f"v_accvgpr_read_b32 v{t+3*r+j}, a{Oreg(4*j+e, qb)+r}")
        for p in range(6): c.append(f"v_pk_mul_f32 {vr(t+2*p,2)}, {vr(t+2*p,2)}, {vr(RL+(qb&~1),2)} op_sel:[0,{qb&1}] op_sel_hi:[1,{qb&1}]")
        for p in range(6): c.append(f"v_cvt_pk_bf16_f32 v{t+p}, v{t+2*p}, v{t+2*p+1}")
        for p in range(3): c.append(f"ds_write_b64 v{WA}, {vr(t+2*p,2)} offset:{(qb&1)*6400 + 96*e + 8*p}")
        return [I(x) for x in c]
    def half(h): return [i for k in range(8) for i in comp(2 * h + k // 4, k % 4, V_K + (k % 3) * 16)]
    RB = [V_VB, V_VB]
    def reads(h): return [I(f"ds_read_b128 {vr(RB[h]+4*i)}, v{RA+i%3} offset:{(i//3)*3200}") for i in range(12)]
    def stores(h):
        o = []
        for i in range(12):
            if i % 4 == 0: o.append(I(f"s_add_u32 s{S_TMP+2}, s{S_TMP+2}, 4096"))
            o.append(I(f"buffer_store_dwordx4 {vr(RB[h]+4*i)}, v{V_KA}, {sr(S_OUT)}, s{S_TMP+2} offen offset:{1024*(i%4)}{stflags}"))
        return o
    E.extend(half(0)[:27])
    for r in range(3):
        A(f"v_add_u32 v2, {64*r}, v0"); A(f"v_mul_u32_u24 v3, 2731, v2"); A("v_lshrrev_b32 v3, 16, v3"); A("v_add_u32 v2, v2, v3"); A(f"v_lshl_add_u32 v{RA+r}, v2, 4, s{S_TMP+3}")
    A(f"s_mul_i32 s{S_TMP+2}, s{S_W}, 24576"); A(f"s_sub_u32 s{S_TMP+2}, s{S_TMP+2}, 4096")
    if CFG["eq"]:
        h0 = half(0); n2 = len(h0) // 2; r0 = reads(0)
        E.extend(h0[27:n2]); E.extend(r0[:6]); E.extend(mix(h0[n2:], stores(0)[:8], CFG["estep"])); E.extend(r0[6:])
    else: E.extend(half(0)[27:]); E.extend(reads(0))
    A(f"v_max_f32 v{RL+8}, v{RL+4}, v{RL+5}"); A(f"v_max3_f32 v{RL+8}, v{RL+8}, v{RL+6}, v{RL+7}")
    A(f"v_add_f32 v{RL+9}, v{RL+4}, v{RL+5}"); A(f"v_add_f32 v{RL+10}, v{RL+6}, v{RL+7}"); A(f"v_add_f32 v{RL+9}, v{RL+9}, v{RL+10}")
    A(f"v_cmp_nge_f32 vcc, 1.0, v{RL+8}"); A(f"v_cmp_u_f32 {sr(S_TMP,2)}, v{RL+9}, v{RL+9}")
    A(f"s_or_b64 vcc, vcc, {sr(S_TMP,2)}"); A(f"s_or_b32 s{S_TMP}, vcc_lo, vcc_hi")
    A(f"v_mov_b32 v{RL+8}, s{S_TMP}"); A(f"s_lshl_b32 s{S_TMP+1}, s{S_W}, 2"); A(f"s_add_u32 s{S_TMP+1}, s{S_TMP+1}, {VOTE}"); A(f"v_mov_b32 v{RL+9}, s{S_TMP+1}")
    A(f"ds_write_b32 v{RL+9}, v{RL+8}", tag="vote")
    if not CFG["eq"]:
        E.extend(mix(half(1), stores(0), CFG["estep"])); E.extend(reads(1)); E.extend(stores(1)); return
    h1 = half(1); n2 = len(h1) // 2; s0 = stores(0); s1 = stores(1); r1 = reads(1)
    E.extend(mix(h1[:n2], s0[8:], CFG["estep"])); E.extend(r1[:6])
    E.extend(mix(h1[n2:], s1[:8], CFG["estep"])); E.extend(r1[6:]); E.extend(s1[8:])
def gen_coop():
    SITES.clear(); LOOPS.clear()
    P = []; A = lambda t, **k: P.append(I(t, **k))
    A("s_cmp_ge_u32 s2, 256"); A("s_cbranch_scc1 L_end")
    A(f"s_and_b32 s{S_H}, s2, 7"); A(f"s_lshr_b32 s{S_TMP}, s2, 6"); A(f"s_lshl_b32 s{S_TMP}, s{S_TMP}, 3"); A(f"s_add_u32 s{S_H}, s{S_H}, s{S_TMP}")
    A(f"s_bfe_u32 s{S_J}, s2, 0x30003")
    if CFG["ipf"]:
        A(f"s_getpc_b64 {sr(S_VZS,2)}"); A("L_pc:"); A(f"s_mov_b32 s{S_VZS+2}, L_codeend-L_pc"); A(f"s_mov_b32 s{S_VZS+3}, 0x00020000")
        A(f"s_bfe_u32 s{S_VZS+4}, s2, 0x50003"); A(f"s_lshl_b32 s{S_VZS+4}, s{S_VZS+4}, 12"); A("v_lshlrev_b32 v1, 4, v0")
        A(f"buffer_load_dwordx4 v[252:255], v1, {sr(S_VZS)}, s{S_VZS+4} offen")
    n0 = len(P)
    load_ptrs_and_srds(A, prod=True, attn=True)
    if CFG["early"]:
        X = []; S_sv = gen.S_TMP
        addr_setup(lambda t, **k: X.append(I(t.replace(f"s{S_TMP}", "s60").replace(f"s{S_TMP+1}", "s61").replace(f"s{S_TMP+2}", "s62"), **k)))
        w = next(i for i in range(n0, len(P)) if P[i].op == "s_waitcnt")
        P[w:w] = X
    stamp(A, 0)
    if gen.PROF: A(f"s_mov_b32 s{gen.S_TS+7}, 0")
    A(f"s_memrealtime {sr(S_NON,2)}")
    A(f"s_mov_b32 s{S_WS+2}, {64<<20:#x}")
    if CFG["tlb"]:
        A(f"buffer_load_dword v248, off, {sr(S_Q)}, 0"); A(f"s_mul_i32 s{S_TMP}, s{S_J}, {TILE}"); A(f"buffer_load_dword v249, off, {sr(S_WS)}, s{S_TMP}")
        A(f"s_sub_u32 s{S_TMP}, 32, s{S_H}"); A(f"s_mul_i32 s{S_TMP}, s{S_TMP}, {HEADWS}"); A(f"buffer_load_dword v250, off, {sr(S_WS)}, s{S_TMP}")
        A(f"buffer_load_dword v251, off, {sr(S_OUT)}, 0")
    if CFG["tlb2"]:
        bs = [S_QK, S_KZ, S_KS, S_QV, S_VZ, S_VS, S_Q, S_DBG, S_WS, S_OUT][:CFG["tlb2"]]
        for i, b_ in enumerate(bs): A(f"v_writelane_b32 v248, s{b_}, {i}"); A(f"v_writelane_b32 v249, s{b_+1}, {i}")
        A(f"s_mov_b64 exec, {(1 << len(bs)) - 1:#x}"); A("global_load_dword v250, v[248:249], off"); A("s_mov_b64 exec, -1")
    if not CFG["early"]: addr_setup(A)
    O0 = Off(S_TMP + 2, S_TMP + 3, S_TMP + 4, S_TMP + 5)
    O1 = NEXT
    set_off(A, O0, S_J)
    K0, VV0, T0, Z0 = 64, 112, 144, 148
    K1, VV1, T1, Z1 = 192, 150, V_T, V_Z
    NV = V_ONES
    for z in (Z0, Z0 + 1, Z1, Z1 + 1): A(f"v_mov_b32 v{z}, 0")
    for i in range(3): P.extend(k_loads(i, K0 + 16 * i, O0))
    P.extend(v_loads(VV0, Z0, O0))
    A(f"s_or_b32 s{S_NON}, s{S_NON}, 1"); A(f"s_lshl_b32 s{S_HOFF}, s{S_H}, 3")
    A(f"v_lshl_add_u32 v3, s{S_W}, 6, v0"); A(f"v_lshlrev_b32 v3, 12, v3")
    A(f"v_mov_b32 v{NV}, s{S_NON}"); A(f"v_mov_b32 v{NV+1}, s{S_NON+1}"); A(f"v_mov_b32 v{NV+2}, 0"); A(f"v_mov_b32 v{NV+3}, 0")
    if DPROF:
        A(f"s_lshl_b32 s{S_HOFF}, s{S_H}, 2"); A(f"s_add_u32 s{S_HOFF}, s{S_HOFF}, 128"); A(f"s_mov_b32 s{S_NON+1}, 0"); A(f"v_mov_b32 v{NV+1}, 0")
        A(f"buffer_atomic_cmpswap {vr(NV,2)}, v3, {sr(S_DBG)}, s{S_HOFF} offen sc0 sc1")
    else: A(f"buffer_atomic_cmpswap_x2 {vr(NV)}, v3, {sr(S_DBG)}, s{S_HOFF} offen sc0 sc1")
    A("v_and_b32 v1, 15, v0"); A("v_lshrrev_b32 v2, 4, v0"); QV = 152; A(f"v_mul_u32_u24 v{QV}, 384, v1"); A(f"v_lshl_add_u32 v{QV}, v2, 4, v{QV}")
    if CFG.get("qco") == 1: A(f"v_lshlrev_b32 v{QV}, 4, v0"); A(f"v_add_u32 v{QV+1}, 3072, v{QV}")
    if CFG.get("qco") == 2:
        A(f"v_and_b32 v1, 7, v0"); A(f"v_lshrrev_b32 v2, 3, v0"); A(f"v_mul_u32_u24 v{QV}, 384, v1"); A(f"v_lshl_add_u32 v{QV}, v2, 4, v{QV}"); A(f"v_add_u32 v{QV+1}, 3072, v{QV}")
    A(f"s_mul_i32 s{S_TMP+6}, s{S_W}, 24576")
    qpos = [0]
    def qissue(upto):
        n = int(round(upto * 6))
        while qpos[0] < n:
            qb, s_ = divmod(qpos[0], 6)
            if qb and s_ == 0: A(f"s_add_u32 s{S_TMP+6}, s{S_TMP+6}, 6144")
            if CFG.get("qco") == 1: A(f"buffer_load_dwordx4 {Qreg(qb,s_)}, v{QV+s_//3}, {sr(S_Q)}, s{S_TMP+6} offen offset:{1024*(s_%3)}{LDQ}")
            elif CFG.get("qco") == 2: A(f"buffer_load_dwordx4 {Qreg(qb,s_)}, v{QV+s_%2}, {sr(S_Q)}, s{S_TMP+6} offen offset:{128*(s_//2)}{LDQ}")
            else: A(f"buffer_load_dwordx4 {Qreg(qb,s_)}, v{QV}, {sr(S_Q)}, s{S_TMP+6} offen offset:{64*s_}{LDQ}")
            qpos[0] += 1
    qissue(CFG["q1"])
    A(f"s_mov_b32 s{S_C768}, s{O0.o768}")
    A(f"s_mov_b32 s{S_PASS}, 0"); A(f"s_lshl_b32 s{S_PFL}, s{S_J}, 9"); A(f"s_mov_b32 s{S_J9}, s{S_PFL}")
    A(f"s_sub_u32 s{S_TMP}, 32, s{S_H}"); A(f"s_mul_i32 s{S_TMP}, s{S_TMP}, {HEADWS}"); A(f"s_lshl_b32 s{S_TMP+1}, s{S_H}, 15"); A(f"s_add_u32 s{S_TMP}, s{S_TMP}, s{S_TMP+1}")
    A(f"s_lshl_b32 s{S_TMP+1}, s{S_W}, 7"); A(f"s_add_u32 s{S_TMP}, s{S_TMP}, s{S_TMP+1}")
    A(f"v_mov_b32 v2, s{S_TMP}"); A(f"v_bfrev_b32 v{V_AT}, 1"); A("v_cmp_eq_u32 vcc, 0, v0"); A(f"v_cndmask_b32 v{V_AT}, v{V_AT}, v2, vcc")
    stamp(A, 8)
    for i in range(3): P.extend(k_comp(K0 + 16 * i, T0) + k_store(i, K0 + 16 * i, S_C768, True, 0))
    P.extend(v_comp(VV0, T0, Z0) + v_store(VV0, T0, S_C768, True, 0))
    A(f"v_readfirstlane_b32 s{S_TMP}, v{NV}"); A(f"v_readfirstlane_b32 s{S_TMP+1}, v{NV+1}")
    A(f"s_cmp_eq_u64 {sr(S_TMP,2)}, 0"); A(f"s_cselect_b64 {sr(S_NON,2)}, {sr(S_NON,2)}, {sr(S_TMP,2)}")
    A(f"v_mov_b32 v{NV}, s{S_NON}"); A(f"v_mov_b32 v{NV+1}, s{S_NON+1}")
    A(f"s_lshl_b32 s{S_TMP}, s{S_W}, 3"); A(f"v_mov_b32 v{NV+2}, s{S_TMP}")
    A(f"v_add_u32 v{NV+2}, {VOTE+16}, v{NV+2}")
    A(f"ds_write_b64 v{NV+2}, {vr(NV,2)}", tag="pds")
    qissue(CFG["q2"])
    stamp(A, 9)
    A(f"v_mov_b32 v{NV+2}, {VOTE+16}")
    A("s_barrier", waits=["pds"])
    A(f"ds_read_b64 {vr(NV,2)}, v{NV+2}")
    for f in range(12): P.append(k_read(0, f))
    zero_acc(A)
    A(f"v_readfirstlane_b32 s{S_NON}, v{NV}"); A(f"v_readfirstlane_b32 s{S_NON+1}, v{NV+1}")
    P.extend(post())
    A("v_and_b32 v2, 3, v0"); A("v_cmp_eq_u32 vcc, 0, v2"); A(f"v_mov_b32 v2, 0x3f803f80")
    for r in range(4): A(f"v_cndmask_b32 v{V_ONES+r}, 0, v2, vcc")
    stamp(A, 10)
    qissue(CFG["q3"])
    PX = 144
    for x in (1, 2):
        A(f"s_xor_b32 s{S_T}, s{S_J}, {x}"); A(f"s_lshl_b32 s{S_TMP}, s{S_T}, 9"); P.append(poll(PX + 2 * (x - 1), S_TMP))
    qissue(CFG["q4"])
    for x in (1, 2):
        A(f"s_xor_b32 s{S_T}, s{S_J}, {x}")
        P.append(cmpflag(PX + 2 * (x - 1))); A(f"s_mul_i32 s{DM[x-1]}, s{S_T}, {TILE}"); A("s_waitcnt lgkmcnt(0)"); A("s_nop 3")
        n = len(SITES); SITES.append(n)
        A(f"s_cbranch_vccnz L_go{x}"); A(f"s_mov_b32 s{S_SITE}, {n}"); A("s_branch L_wait"); A(f"L_ret{n}:")
        for f in range(12): P.append(k_read(0, f))
        A("s_waitcnt lgkmcnt(0)")
        A(f"L_go{x}:")
        stamp(A, 10 + x)
        if x == 2 and CFG["d2late"]: D2 = dma_group(x, DM[x-1])
        else: P.extend(dma_group(x, DM[x-1]))
        if x == 1: qissue(CFG["q5"])
    qissue(4)
    P.extend(late_poll(0))
    A(f"s_add_u32 s{S_TMP}, s{S_J}, 8"); set_off(A, NEXT, S_TMP)
    gen.V_P = V_V
    first_max(A)
    if CFG["d2late"]: P.extend(D2)
    pipe_init(A, P)
    stamp(A, 1)
    BA = block("L_loopA", 12, True, S_CNT)
    X1 = [I(f"s_mov_b32 s{S_CNT}, {CFG['nB']}")]; stamp(lambda t: X1.append(I(t)), 5)
    BB = block("L_loopB", 8, True, S_CNT)
    X2 = [I(f"s_mov_b32 s{S_CNT}, {CFG['nC']}")]; stamp(lambda t: X2.append(I(t)), 6)
    BC = block("L_loopC", 4, False, S_CNT)
    E = []; A = lambda t, **k: E.append(I(t, **k))
    stamp(A, 2)
    if CFG["epi2"]: epilogue2(E, CFG.get("ostf", ""))
    else: epilogue(A, CFG.get("ostf", ""))
    stamp(A, 3)
    if gen.PROF: A("s_waitcnt vmcnt(0)"); stamp(A, 4)
    if gen.PROF and not DPROF: stamps_out(A)
    if DPROF:
        A(f"v_lshl_add_u32 v2, s{S_W}, 6, v0"); A("v_lshlrev_b32 v2, 12, v2")
        for i in range(8):
            A(f"s_sub_u32 s{S_TMP}, s{gen.S_TS+i}, s{gen.S_TS}") if 0 < i < 7 else A(f"s_mov_b32 s{S_TMP}, s{gen.S_TS+i}") if i else A(f"s_mov_b32 s{S_TMP}, 0")
            A(f"v_mov_b32 v16, s{S_TMP}"); A(f"buffer_atomic_add v16, v2, {sr(S_DBG)}, 0 offen offset:{32+4*i} sc1")
            A(f"s_not_b32 s{S_TMP}, s{gen.S_TS}") if i == 0 else A(f"s_mov_b32 s{S_TMP}, s{gen.S_TS+i}")
            A(f"v_mov_b32 v17, s{S_TMP}"); A(f"buffer_atomic_umax v17, v2, {sr(S_DBG)}, 0 offen offset:{4*i} sc1"); A("s_nop 4")
    A(f"v_mov_b32 v{V_S+4}, {VOTE}")
    A("s_barrier", waits=["vote"])
    A(f"ds_read_b128 {vr(V_S)}, v{V_S+4}")
    A(f"v_or3_b32 v{V_S+4}, v{V_S}, v{V_S+1}, v{V_S+2}"); A(f"v_or_b32 v{V_S+4}, v{V_S+4}, v{V_S+3}"); A(f"v_readfirstlane_b32 s{S_TMP}, v{V_S+4}")
    A(f"s_cmp_lg_u32 s{S_PASS}, 0"); A("s_cbranch_scc1 L_end")
    A(f"s_cmp_eq_u32 s{S_TMP}, 0"); A("s_cbranch_scc1 L_end")
    if CFG.get('abl') or CFG.get('pabl') or CFG.get('qco'): A("s_branch L_end")
    A("s_waitcnt vmcnt(0) lgkmcnt(0)")
    G = []; A = lambda t, **k: G.append(I(t, **k))
    A(f"s_xor_b32 s{S_T}, s{S_J}, 1"); A(f"s_lshl_b32 s{S_TMP}, s{S_T}, 9"); G.append(poll(V_POLL, S_TMP)); G.append(cmpflag()); A("s_nop 4"); G.extend(check_site(False))
    A("s_barrier")
    gen.V_P = V_V + 4
    fallback_max(A)
    A(f"s_mov_b32 s{S_PASS}, 1")
    for t in range(3):
        A(f"s_xor_b32 s{S_T}, s{S_J}, {t}"); A(f"s_mul_i32 s{S_DMA}, s{S_T}, {TILE}"); G.extend(dma_group(t))
    zero_acc(A)
    G.extend(late_poll(0) + late_poll(1)); pipe_init(A, G)
    A("s_waitcnt vmcnt(0)"); A("s_barrier")
    for f in range(12): G.append(k_read(0, f))
    A("s_waitcnt lgkmcnt(0)"); A(f"s_mov_b32 s{S_CNT}, 16"); A("s_nop 7"); A("s_branch L_loopC")
    W = wait_routine()
    Z = [I("L_end:"), I("s_endpgm"), I("L_codeend:")]
    n = finalize([("P", P), ("A", BA), ("x", X1), ("B", BB), ("B", BB), ("x", X2), ("C", BC), ("C", BC), ("E", E), ("G", G), ("C", BC), ("C", BC)],
                 [("P", P), ("A", BA), ("x", X1), ("B", BB), ("x", X2), ("C", BC), ("E", E)],
                 [("W", W)])
    print("nops", n, "sizes", len(P), len(BA), len(BB), len(BC), len(E), len(G), len(W), file=sys.stderr)
    return "".join(text(x) for x in (P, BA, X1, BB, X2, BC, E, G, W, Z))
def file_coop():
    s = HDR + f"; @launch grid=(256,1,1) block=(256,1,1) lds={STG+4*STW}\n"
    s += '.amdgcn_target "amdgcn-amd-amdhsa--gfx950"\n.text\n'
    s += khead(NAME + "_kernel") + gen_coop()
    s += '.section .rodata,"a"\n.p2align 6\n' + kd(NAME + "_kernel")
    return s
if __name__ == "__main__":
    gen.PROF = 4 if "prof4" in sys.argv else 3 if "prof3" in sys.argv else 2 if "prof2" in sys.argv else ("prof" in sys.argv)
    if "cyc" in sys.argv: gen.CLK = "s_memtime"
    for a in sys.argv[2:]:
        if "=" in a:
            k, v = a.split("=")
            if k == "STM": gen.STM = eval(v)
            elif k in globals(): globals()[k] = eval(v)
            else: CFG[k] = eval(v)
    open(sys.argv[1], "w").write(file_coop())
```
